```python
import torch

def _softmax(x, axis=-1):
    return torch.softmax(x, dim=axis)
def _gelu(x):
    return torch.nn.functional.gelu(x, approximate="tanh")
def _silu(x):
    return torch.nn.functional.silu(x)
def _sigmoid(x):
    return torch.sigmoid(x)
def _layernorm(x, axis=-1, eps=1e-5):
    m = x.mean(dim=axis, keepdim=True)
    v = x.var(dim=axis, keepdim=True, unbiased=False)
    return (x - m) / torch.sqrt(v + eps)
def _scatter_add(tgt, idx, src, axis=0):
    return tgt.clone().index_add_(axis, idx, src)
def _segment_sum(src, seg, n):
    out = torch.zeros((n,) + src.shape[1:], dtype=src.dtype)
    return out.index_add_(0, seg, src)
def _pad(x, pw):
    flat = tuple(v for pair in reversed(pw) for v in pair)
    return torch.nn.functional.pad(x, flat)

kernel_name = 'standalone__detection_seg_fpn_lateral__vision'

def setup_inputs():

    _w = (lambda a: (lambda t: t.to(torch.bfloat16) if t.is_floating_point() else t)(torch.as_tensor(a)))
    H = W = (384 // 2) * 2
    C = 384
    k = 1
    return {
        "c_fine": _w((lambda *s: torch.randn(*s, dtype=torch.bfloat16) * 0.05)(1, H, W, C)),
        "p_coarse": _w((lambda *s: torch.randn(*s, dtype=torch.bfloat16) * 0.05)(1, H // 2, W // 2, C)),
        "w_lat": _w((lambda *s: torch.randn(*s, dtype=torch.bfloat16) * 0.05)(C, C)),
        "w_out": _w((lambda *s: torch.randn(*s, dtype=torch.bfloat16) * 0.05)(k, k, C, C)),
    }

def reference(c_fine, p_coarse, w_lat, w_out):
    B, H, W, C = c_fine.shape
    k = 1
    lat = torch.einsum("bhwc,cd->bhwd", c_fine, w_lat)
    up = (lambda x, n, axis: torch.repeat_interleave(x, n, dim=axis))((lambda x, n, axis: torch.repeat_interleave(x, n, dim=axis))(p_coarse, 2, axis=1), 2, axis=2)
    m = lat + up
    pad = k // 2
    mp = _pad(m, ((0, 0), (pad, pad), (pad, pad), (0, 0)))
    o = None
    for di in range(k):
        for dj in range(k):
            t = torch.einsum("bhwc,cd->bhwd", mp[:, di:di + H, dj:dj + W, :], w_out[di, dj])
            o = t if o is None else o + t
    return o
```

```python
import sys

KN = "standalone__detection_seg_fpn_lateral__vision_kernel"
C_BYTES = 113246208
P_BYTES = 28311552
W_BYTES = 294912
SEG = 24576
UNIT = 12288
NWG = 256
NU = 9
NSEG = 18
NSLOT = 6
PBASE = 163840 - NU * UNIT


class Em:
    def __init__(self):
        self.lines = []
        self.vm = []
        self.vm_done = 0
        self.lg = []
        self.lg_done = 0

    def I(self, s):
        self.lines.append("    " + s)

    def L(self, s):
        self.lines.append(s + ":")

    def C(self, s):
        self.lines.append("    ; " + s)

    def vmop(self, s, tag):
        self.I(s)
        self.vm.append(tag)

    def lgop(self, s, tag):
        self.I(s)
        self.lg.append(tag)

    def _need(self, lst, done, pred):
        idx = -1
        for i in range(len(lst) - 1, done - 1, -1):
            if pred(lst[i]):
                idx = i
                break
        if idx < 0:
            return None
        return len(lst) - 1 - idx

    def wait_vm(self, pred):
        n = self._need(self.vm, self.vm_done, pred)
        if n is None:
            return
        n = min(n, 63)
        self.I("s_waitcnt vmcnt(%d)" % n)
        self.vm_done = max(self.vm_done, len(self.vm) - n)

    def wait_lg(self, pred):
        n = self._need(self.lg, self.lg_done, pred)
        if n is None:
            return
        n = min(n, 15)
        self.I("s_waitcnt lgkmcnt(%d)" % n)
        self.lg_done = max(self.lg_done, len(self.lg) - n)

    def text(self):
        return "\n".join(self.lines) + "\n"


def srd(e, d, lo, hi, nbytes):
    e.I("s_mov_b32 s%d, s%d" % (d, lo))
    e.I("s_mov_b32 s%d, s%d" % (d + 1, hi))
    e.I("s_mov_b32 s%d, %d" % (d + 2, nbytes))
    e.I("s_mov_b32 s%d, 0x00020000" % (d + 3))


def gen_prep():
    e = Em()
    e.L("prep_kernel")
    e.I("s_cmp_ge_u32 s2, 72")
    e.I("s_cbranch_scc1 L_prep_end")
    e.I("s_load_dwordx4 s[4:7], s[0:1], 16")
    e.I("s_load_dwordx2 s[24:25], s[0:1], 48")
    e.I("s_mul_i32 s26, s2, 43691")
    e.I("s_lshr_b32 s26, s26, 18")
    e.I("s_mul_i32 s27, s26, 6")
    e.I("s_sub_u32 s27, s2, s27")
    e.I("v_and_b32 v1, 63, v0")
    e.I("v_lshrrev_b32 v2, 6, v0")
    e.I("v_and_b32 v3, 15, v1")
    e.I("v_lshrrev_b32 v4, 4, v1")
    e.I("s_lshr_b32 s28, s27, 1")
    e.I("s_lshl_b32 s28, s28, 5")
    e.I("s_and_b32 s29, s27, 1")
    e.I("s_lshl_b32 s29, s29, 2")
    e.I("s_add_u32 s28, s28, s29")
    e.I("v_mul_u32_u24 v5, 96, v2")
    e.I("v_add_u32 v5, s28, v5")
    e.I("v_lshrrev_b32 v6, 2, v3")
    e.I("v_lshlrev_b32 v6, 3, v6")
    e.I("v_and_b32 v7, 3, v3")
    e.I("v_add_u32 v6, v6, v7")
    e.I("v_add_u32 v5, v5, v6")
    e.I("v_lshlrev_b32 v5, 1, v5")
    e.I("v_mul_u32_u24 v8, 6144, v4")
    e.I("v_add_u32 v8, v8, v5")
    e.I("v_add_u32 v9, 3072, v8")
    e.I("v_mul_u32_u24 v10, 768, v6")
    e.I("v_lshlrev_b32 v11, 4, v4")
    e.I("v_add_u32 v10, v10, v11")
    e.I("v_add_u32 v11, 3072, v10")
    e.I("v_mul_u32_u24 v12, 73728, v2")
    e.I("v_lshlrev_b32 v13, 4, v1")
    e.I("v_add_u32 v12, v12, v13")
    e.I("s_lshl_b32 s30, s2, 10")
    e.I("s_add_u32 s31, s30, %d" % W_BYTES)
    e.I("s_mul_i32 s32, s26, 24576")
    e.I("s_waitcnt lgkmcnt(0)")
    srd(e, 8, 4, 5, W_BYTES)
    srd(e, 12, 6, 7, W_BYTES)
    srd(e, 16, 24, 25, 2 * W_BYTES)
    for t in range(2):
        for sp in range(12):
            r = 16 + (t * 12 + sp) * 4
            e.vmop("buffer_load_dwordx4 v[%d:%d], v%d, s[8:11], s32 offen offset:%d" % (r, r + 3, 10 + t, 64 * sp), "wl")
    for ee in range(8):
        e.vmop("buffer_load_ushort v%d, v%d, s[12:15], s32 offen offset:%d" % (112 + ee, 8 + ee // 4, 768 * (ee % 4)), "own")
    e.I("s_mov_b32 s33, 0")
    for sp in range(12):
        for ee in range(8):
            e.vmop("buffer_load_ushort v%d, v%d, s[12:15], s33 offen offset:%d"
                   % (128 + sp * 8 + ee, 8 + ee // 4, 768 * (ee % 4)), ("wo", sp))
        if sp < 11:
            e.I("s_add_u32 s33, s33, 24576")
    e.wait_vm(lambda t: t == "own")
    for q in range(4):
        e.I("v_lshl_or_b32 v%d, v%d, 16, v%d" % (120 + q, 112 + 2 * q + 1, 112 + 2 * q))
    e.vmop("buffer_store_dwordx4 v[120:123], v12, s[16:19], s30 offen", "st")
    for sp in range(12):
        e.wait_vm(lambda t: t == ("wo", sp))
        b0 = 128 + sp * 8
        for q in range(4):
            e.I("v_lshl_or_b32 v%d, v%d, 16, v%d" % (b0 + q, b0 + 2 * q + 1, b0 + 2 * q))
        e.I("s_nop 1")
        for t in range(2):
            r = 16 + (t * 12 + sp) * 4
            d = 224 + 4 * t
            cc = "0" if sp == 0 else "v[%d:%d]" % (d, d + 3)
            e.I("v_mfma_f32_16x16x32_bf16 v[%d:%d], v[%d:%d], v[%d:%d], %s" % (d, d + 3, r, r + 3, b0, b0 + 3, cc))
    e.I("s_nop 15")
    for q in range(4):
        e.I("v_cvt_pk_bf16_f32 v%d, v%d, v%d" % (232 + q, 224 + 2 * q, 224 + 2 * q + 1))
    e.vmop("buffer_store_dwordx4 v[232:235], v12, s[16:19], s31 offen", "st")
    e.L("L_prep_end")
    e.I("s_endpgm")
    return e.text()


V_CDMA = 1
V_CA = 8
V_CB = 12
V_ST = 16
V_WL = 17
V_B = 20
NB = 5
D = 4
V_ACC = 40
V_QF = 88
V_PDMA = 88
V_PA = 92
V_PB = 96
V_T = 100
V_Q = 112
V_W = 224

S_C, S_P, S_WS, S_OUT = 8, 12, 16, 20
S_SEG = 24
S_W = 3
S_T = 44


def wreg(f):
    if f < 64:
        return "a[%d:%d]" % (4 * f, 4 * f + 3)
    r = V_W + 4 * (f - 64)
    return "v[%d:%d]" % (r, r + 3)


def gen_main():
    e = Em()
    e.L(KN)
    e.I("s_cmp_ge_u32 s2, %d" % NWG)
    e.I("s_cbranch_scc1 L_end")
    e.I("s_load_dwordx4 s[4:7], s[0:1], 0")
    e.I("s_load_dwordx2 s[44:45], s[0:1], 32")
    e.I("s_load_dwordx2 s[46:47], s[0:1], 48")
    T = V_T
    e.I("v_and_b32 v%d, 63, v0" % T)
    e.I("v_lshrrev_b32 v%d, 6, v0" % (T + 1))
    e.I("v_and_b32 v%d, 15, v0" % (T + 2))
    e.I("v_bfe_u32 v%d, v0, 4, 2" % (T + 3))
    e.I("v_readfirstlane_b32 s%d, v%d" % (S_W, T + 1))
    for r in range(3):
        e.I("v_mul_u32_u24 v%d, 192, v%d" % (T + 4, T + 1))
        e.I("v_add3_u32 v%d, v%d, %d, v%d" % (T + 4, T + 4, 64 if r else 0, T))
        if r == 2:
            e.I("v_add_u32 v%d, 64, v%d" % (T + 4, T + 4))
        e.I("v_mul_u32_u24 v%d, 1366, v%d" % (T + 5, T + 4))
        e.I("v_lshrrev_b32 v%d, 16, v%d" % (T + 5, T + 5))
        e.I("v_xor_b32 v%d, v%d, v%d" % (T + 4, T + 4, T + 5))
        e.I("v_lshlrev_b32 v%d, 4, v%d" % (T + 4, T + 4))
        e.I("v_subrev_u32 v%d, %d, v%d" % (V_PDMA + r, 1024 * r, T + 4))
    e.I("v_mul_u32_u24 v%d, 73728, v%d" % (V_WL, T + 1))
    e.I("v_lshl_add_u32 v%d, v%d, 4, v%d" % (V_WL, T, V_WL))
    e.I("s_mul_i32 s48, s2, %d" % (NU * UNIT))
    e.I("s_mul_i32 s49, s%d, 3072" % S_W)
    e.I("s_add_u32 s49, s49, %d" % PBASE)
    e.I("s_waitcnt lgkmcnt(0)")
    srd(e, S_P, 6, 7, P_BYTES)
    srd(e, S_WS, 46, 47, 2 * W_BYTES)
    srd(e, S_C, 4, 5, C_BYTES)
    srd(e, S_OUT, 44, 45, C_BYTES)

    def dma_p(u):
        e.I("s_add_u32 m0, s49, %d" % (u * UNIT))
        e.I("s_add_u32 s50, s48, %d" % (u * UNIT))
        for r in range(3):
            e.vmop("buffer_load_dwordx4 v%d, s[%d:%d], s50 offen offset:%d lds" % (V_PDMA + r, S_P, S_P + 3, 1024 * r),
                   ("p", u))

    def load_w(f, which):
        base = which * W_BYTES + 4096 * (f >> 2)
        if load_w.cur != base:
            e.I("s_mov_b32 s51, %d" % base)
            load_w.cur = base
        e.vmop("buffer_load_dwordx4 %s, v%d, s[%d:%d], s51 offen offset:%d" % (wreg(f), V_WL, S_WS, S_WS + 3, 1024 * (f & 3)),
               ("w", which, f))
    load_w.cur = None

    for u in range(NU):
        dma_p(u)
    for f in range(72):
        load_w(f, 0)

    for q in range(6):
        e.I("v_mul_u32_u24 v%d, 384, v%d" % (T + 4, T + 1))
        e.I("v_add_u32 v%d, %d, v%d" % (T + 4, 64 * q, T + 4))
        e.I("v_add_u32 v%d, v%d, v%d" % (T + 4, T + 4, T))
        e.I("v_mul_u32_u24 v%d, 683, v%d" % (T + 5, T + 4))
        e.I("v_lshrrev_b32 v%d, 16, v%d" % (T + 5, T + 5))
        e.I("v_xor_b32 v%d, v%d, v%d" % (T + 4, T + 4, T + 5))
        e.I("v_lshlrev_b32 v%d, 4, v%d" % (T + 4, T + 4))
        e.I("v_subrev_u32 v%d, %d, v%d" % (V_CDMA + q, 1024 * (q & 3), T + 4))
    e.I("s_mul_i32 s52, s2, %d" % NU)
    for u in range(NU):
        e.I("s_add_u32 s53, s52, %d" % u)
        e.I("s_mul_i32 s54, s53, 43691")
        e.I("s_lshr_b32 s54, s54, 19")
        e.I("s_mul_i32 s54, s54, 12")
        e.I("s_add_u32 s54, s54, s53")
        e.I("s_mul_i32 s%d, s54, %d" % (S_SEG + 2 * u, SEG))
        e.I("s_add_u32 s%d, s%d, %d" % (S_SEG + 2 * u + 1, S_SEG + 2 * u, 12 * SEG))
    e.I("s_mul_i32 s55, s%d, 6144" % S_W)

    def dma_c_ops(n):
        slot = n % NSLOT
        ops = []
        for q in range(6):
            def op(q=q):
                if q == 0 or q == 4:
                    e.I("s_add_u32 m0, s55, %d" % (slot * SEG + (4096 if q == 4 else 0)))
                    e.I("s_nop 0")
                e.vmop("buffer_load_dwordx4 v%d, s[%d:%d], s%d offen offset:%d lds"
                       % (V_CDMA + q, S_C, S_C + 3, S_SEG + n, 1024 * (q & 3)), ("c", n))
            ops.append(op)
        return ops

    for n in (0, 1):
        for op in dma_c_ops(n):
            op()

    for sg in range(4):
        e.I("v_add_u32 v%d, %d, v%d" % (T + 4, 4 * sg, T + 3))
        e.I("v_xor_b32 v%d, v%d, v%d" % (T + 4, T + 4, T + 2))
        e.I("v_lshlrev_b32 v%d, 4, v%d" % (T + 4, T + 4))
        e.I("v_mul_u32_u24 v%d, 1536, v%d" % (T + 5, T + 2))
        e.I("v_add_u32 v%d, v%d, v%d" % (V_CA + sg, T + 4, T + 5))
        e.I("v_add_u32 v%d, %d, v%d" % (V_CB + sg, 3 * SEG, V_CA + sg))
        e.I("v_mul_u32_u24 v%d, 768, v%d" % (T + 5, T + 2))
        e.I("v_add_u32 v%d, v%d, v%d" % (V_PA + sg, T + 4, T + 5))
        e.I("v_add_u32 v%d, %d, v%d" % (V_PA + sg, PBASE, V_PA + sg))
        e.I("v_add_u32 v%d, %d, v%d" % (V_PB + sg, 6 * UNIT, V_PA + sg))
    e.I("v_mul_u32_u24 v%d, 1536, v%d" % (V_ST, T + 2))
    e.I("v_mul_u32_u24 v%d, 192, v%d" % (T + 4, T + 1))
    e.I("v_add_u32 v%d, v%d, v%d" % (V_ST, V_ST, T + 4))
    e.I("v_lshl_add_u32 v%d, v%d, 4, v%d" % (V_ST, T + 3, V_ST))

    steps = []
    for u in range(NU):
        for s in range(12):
            base = (V_PA if u < 6 else V_PB) + (s & 3)
            off = (u % 6) * UNIT + (s >> 2) * 256
            steps.append(dict(ph=1, u=u, s=s, grp=u, rd=(base, off), pre_read=[], pre=[], fill=[]))
    for n in range(NSEG):
        slot = n % NSLOT
        for dx in range(2):
            for s in range(12):
                base = (V_CA if slot < 3 else V_CB) + (s & 3)
                off = (slot % 3) * SEG + dx * 768 + (s >> 2) * 256
                steps.append(dict(ph=2, u=n // 2, n=n, dx=dx, s=s, grp=NU + 2 * n + dx, rd=(base, off),
                                  pre_read=[], pre=[], fill=[]))
    nst = len(steps)

    def stp(grp, s):
        return steps[grp * 12 + s]

    def acc(grp, b):
        r = V_ACC + 24 * (grp & 1) + 4 * b
        return r

    def p_ready():
        e.wait_vm(lambda t: t[0] == "p")
        e.I("s_barrier")
    steps[0]["pre_read"].append(p_ready)

    for k, u in enumerate((2, 4, 6, 8)):
        n = 2 + k
        st = stp(u, 0)
        st["pre"].append(lambda: e.I("s_barrier"))
        ops = dma_c_ops(n)
        for q, op in enumerate(ops):
            stp(u, q // 2)["fill"].append(op)

    for u in range(NU):
        for j in range(3):
            for d in range(4):
                a = acc(u, 2 * j) + 2 * d
                ins = "v_cvt_pk_bf16_f32 v%d, v%d, v%d" % (V_Q + 12 * u + 4 * j + d, a, a + 1)
                stp(u + 1, 1 + j)["fill"].append(lambda ins=ins: e.I(ins))

    for s in range(12):
        for b in range(6):
            f = s * 6 + b
            if s < 11:
                stp(NU - 1, s + 1)["fill"].append(lambda f=f: load_w(f, 1))
            else:
                stp(NU, 0)["pre"].append(lambda f=f: load_w(f, 1))

    def unpack_ops(u):
        ops = []
        for b in range(6):
            j, beta = b >> 1, b & 1
            for r in range(4):
                src = V_Q + 12 * u + 4 * j + 2 * beta + (r >> 1)
                dst = V_QF + 4 * b + r
                if r & 1:
                    ins = "v_and_b32 v%d, 0xffff0000, v%d" % (dst, src)
                else:
                    ins = "v_lshlrev_b32 v%d, 16, v%d" % (dst, src)
                ops.append(lambda ins=ins: e.I(ins))
        return ops
    for u in range(NU):
        ops = unpack_ops(u)
        if u == 0:
            g = NU - 1
            for k, op in enumerate(ops):
                stp(g, 8 + k // 6)["fill"].append(op)
        else:
            g = NU + 4 * u - 1
            for k, op in enumerate(ops):
                stp(g, 5 + k // 4)["fill"].append(op)

    for n in range(NSEG):
        st = stp(NU + 2 * n, 0)

        def seg_ready(n=n):
            e.wait_vm(lambda t: t == ("c", n))
            e.I("s_barrier")
        st["pre_read"].append(seg_ready)
        if 2 <= n and n + 4 < NSEG:
            ops = dma_c_ops(n + 4)
            t0 = (NU + 2 * n) * 12 - D
            for q, op in enumerate(ops):
                steps[t0 + 1 + q // 2]["fill"].append(op)

    def epi_ops(g):
        n, dx = (g - NU) // 2, (g - NU) % 2
        ops = []
        for j in range(3):
            a0 = acc(g, 2 * j)
            for d in range(4):
                ins = "v_cvt_pk_bf16_f32 v%d, v%d, v%d" % (a0 + d, a0 + 2 * d, a0 + 2 * d + 1)
                ops.append(lambda ins=ins: e.I(ins))
            ins = "buffer_store_dwordx4 v[%d:%d], v%d, s[%d:%d], s%d offen offset:%d" % (
                a0, a0 + 3, V_ST, S_OUT, S_OUT + 3, S_SEG + n, 768 * dx + 64 * j)
            ops.append(lambda ins=ins: e.vmop(ins, ("st",)))
        return ops
    ngrp = NU + 2 * NSEG
    for g in range(NU, ngrp - 1):
        ops = epi_ops(g)
        for k, op in enumerate(ops):
            stp(g + 1, 1 + k // 5)["fill"].append(op)

    def emit_read(t):
        st = steps[t]
        for f in st["pre_read"]:
            f()
        base, off = st["rd"]
        r = V_B + 4 * (t % NB)
        e.lgop("ds_read_b128 v[%d:%d], v%d offset:%d" % (r, r + 3, base, off), t)

    for t in range(D):
        emit_read(t)
    for t, st in enumerate(steps):
        e.C("step %d ph%d grp %d s %d" % (t, st["ph"], st["grp"], st["s"]))
        e.wait_lg(lambda x: x == t)
        for f in st["pre"]:
            f()
        fills = list(st["fill"])
        g, s = st["grp"], st["s"]
        br = V_B + 4 * (t % NB)
        nf = len(fills)
        per = (nf + 4) // 5
        for b in range(6):
            f = s * 6 + b
            which = 0 if st["ph"] == 1 else 1
            e.wait_vm(lambda x: x == ("w", which, f))
            a = acc(g, b)
            if s == 0:
                cc = "0" if st["ph"] == 1 else "v[%d:%d]" % (V_QF + 4 * b, V_QF + 4 * b + 3)
            else:
                cc = "v[%d:%d]" % (a, a + 3)
            e.I("v_mfma_f32_16x16x32_bf16 v[%d:%d], %s, v[%d:%d], %s" % (a, a + 3, wreg(f), br, br + 3, cc))
            if b == 0:
                if t + D < nst:
                    emit_read(t + D)
            else:
                for _ in range(per):
                    if fills:
                        fills.pop(0)()
        assert not fills
    e.I("s_nop 7")
    e.I("s_nop 1")
    for op in epi_ops(ngrp - 1):
        op()
    e.L("L_end")
    e.I("s_endpgm")
    return e.text()


HEADER = open("standalone__detection_seg_fpn_lateral__vision.s.ref").read().split("; Override")[0]


def kd(name, vgpr, accum, sgpr):
    return """.amdhsa_kernel %s
  .amdhsa_next_free_vgpr %d
  .amdhsa_next_free_sgpr %d
  .amdhsa_accum_offset %d
  .amdhsa_group_segment_fixed_size 0
  .amdhsa_kernarg_size 56
  .amdhsa_user_sgpr_count 2
  .amdhsa_user_sgpr_kernarg_segment_ptr 1
  .amdhsa_system_sgpr_workgroup_id_x 1
.end_amdhsa_kernel
""" % (name, vgpr, sgpr, accum)


def main():
    out = HEADER
    out += "; @launch kernel=prep_kernel grid=(72,1,1) block=(256,1,1) lds=0\n"
    out += "; @launch kernel=%s grid=(256,1,1) block=(256,1,1) lds=163840\n" % KN
    out += '.amdgcn_target "amdgcn-amd-amdhsa--gfx950"\n.text\n'
    out += ".globl prep_kernel\n.p2align 8\n.type prep_kernel,@function\n"
    out += gen_prep()
    out += ".globl %s\n.p2align 8\n.type %s,@function\n" % (KN, KN)
    out += gen_main()
    out += '.section .rodata,"a"\n.p2align 6\n'
    out += kd("prep_kernel", 256, 256, 64)
    out += ".p2align 6\n"
    out += kd(KN, 512, 256, 64)
    path = sys.argv[1] if len(sys.argv) > 1 else "standalone__detection_seg_fpn_lateral__vision.s"
    open(path, "w").write(out)


if __name__ == "__main__":
    main()
```

```python
import sys, os
STAMP = os.environ.get("STAMP", "0") == "1"
LDF = os.environ.get("LDF", "")
STF = os.environ.get("STF", "")
if LDF: LDF = " " + LDF
if STF: STF = " " + STF

KN = "standalone__detection_seg_fpn_lateral__vision_kernel"
C_BYTES = 113246208
P_BYTES = 28311552
W_BYTES = 294912
SEG = 24576
UNIT = 12288
NWG = 256
NU = 9
NSEG = 18
NSLOT = 6
PBASE = 163840 - NU * UNIT


class Em:
    def __init__(self):
        self.lines = []
        self.vm = []
        self.vm_done = 0
        self.lg = []
        self.lg_done = 0

    def I(self, s):
        self.lines.append("    " + s)

    def L(self, s):
        self.lines.append(s + ":")

    def C(self, s):
        self.lines.append("    ; " + s)

    def vmop(self, s, tag):
        self.I(s)
        self.vm.append(tag)

    def lgop(self, s, tag):
        self.I(s)
        self.lg.append(tag)

    def _need(self, lst, done, pred):
        idx = -1
        for i in range(len(lst) - 1, done - 1, -1):
            if pred(lst[i]):
                idx = i
                break
        if idx < 0:
            return None
        return len(lst) - 1 - idx

    def wait_vm(self, pred):
        n = self._need(self.vm, self.vm_done, pred)
        if n is None:
            return
        n = min(n, 63)
        self.I("s_waitcnt vmcnt(%d)" % n)
        self.vm_done = max(self.vm_done, len(self.vm) - n)

    def wait_lg(self, pred):
        n = self._need(self.lg, self.lg_done, pred)
        if n is None:
            return
        n = min(n, 15)
        self.I("s_waitcnt lgkmcnt(%d)" % n)
        self.lg_done = max(self.lg_done, len(self.lg) - n)

    def text(self):
        return "\n".join(self.lines) + "\n"


def srd(e, d, lo, hi, nbytes):
    e.I("s_mov_b32 s%d, s%d" % (d, lo))
    e.I("s_mov_b32 s%d, s%d" % (d + 1, hi))
    e.I("s_mov_b32 s%d, %d" % (d + 2, nbytes))
    e.I("s_mov_b32 s%d, 0x00020000" % (d + 3))


def gen_prep():
    e = Em()
    e.L("prep_kernel")
    e.I("s_cmp_ge_u32 s2, 72")
    e.I("s_cbranch_scc1 L_prep_end")
    e.I("s_load_dwordx4 s[4:7], s[0:1], 16")
    e.I("s_load_dwordx2 s[24:25], s[0:1], 48")
    e.I("s_mul_i32 s26, s2, 43691")
    e.I("s_lshr_b32 s26, s26, 18")
    e.I("s_mul_i32 s27, s26, 6")
    e.I("s_sub_u32 s27, s2, s27")
    e.I("v_and_b32 v1, 63, v0")
    e.I("v_lshrrev_b32 v2, 6, v0")
    e.I("v_and_b32 v3, 15, v1")
    e.I("v_lshrrev_b32 v4, 4, v1")
    e.I("s_lshr_b32 s28, s27, 1")
    e.I("s_lshl_b32 s28, s28, 5")
    e.I("s_and_b32 s29, s27, 1")
    e.I("s_lshl_b32 s29, s29, 2")
    e.I("s_add_u32 s28, s28, s29")
    e.I("v_mul_u32_u24 v5, 96, v2")
    e.I("v_add_u32 v5, s28, v5")
    e.I("v_lshrrev_b32 v6, 2, v3")
    e.I("v_lshlrev_b32 v6, 3, v6")
    e.I("v_and_b32 v7, 3, v3")
    e.I("v_add_u32 v6, v6, v7")
    e.I("v_add_u32 v5, v5, v6")
    e.I("v_lshlrev_b32 v5, 1, v5")
    e.I("v_mul_u32_u24 v8, 6144, v4")
    e.I("v_add_u32 v8, v8, v5")
    e.I("v_add_u32 v9, 3072, v8")
    e.I("v_mul_u32_u24 v10, 768, v6")
    e.I("v_lshlrev_b32 v11, 4, v4")
    e.I("v_add_u32 v10, v10, v11")
    e.I("v_add_u32 v11, 3072, v10")
    e.I("v_mul_u32_u24 v12, 73728, v2")
    e.I("v_lshlrev_b32 v13, 4, v1")
    e.I("v_add_u32 v12, v12, v13")
    e.I("s_lshl_b32 s30, s2, 10")
    e.I("s_add_u32 s31, s30, %d" % W_BYTES)
    e.I("s_mul_i32 s32, s26, 24576")
    e.I("s_waitcnt lgkmcnt(0)")
    srd(e, 8, 4, 5, W_BYTES)
    srd(e, 12, 6, 7, W_BYTES)
    srd(e, 16, 24, 25, 2 * W_BYTES)
    for t in range(2):
        for sp in range(12):
            r = 16 + (t * 12 + sp) * 4
            e.vmop("buffer_load_dwordx4 v[%d:%d], v%d, s[8:11], s32 offen offset:%d" % (r, r + 3, 10 + t, 64 * sp), "wl")
    for ee in range(8):
        e.vmop("buffer_load_ushort v%d, v%d, s[12:15], s32 offen offset:%d" % (112 + ee, 8 + ee // 4, 768 * (ee % 4)), "own")
    e.I("s_mov_b32 s33, 0")
    for sp in range(12):
        for ee in range(8):
            e.vmop("buffer_load_ushort v%d, v%d, s[12:15], s33 offen offset:%d"
                   % (128 + sp * 8 + ee, 8 + ee // 4, 768 * (ee % 4)), ("wo", sp))
        if sp < 11:
            e.I("s_add_u32 s33, s33, 24576")
    e.wait_vm(lambda t: t == "own")
    for q in range(4):
        e.I("v_lshl_or_b32 v%d, v%d, 16, v%d" % (120 + q, 112 + 2 * q + 1, 112 + 2 * q))
    e.vmop("buffer_store_dwordx4 v[120:123], v12, s[16:19], s30 offen", "st")
    for sp in range(12):
        e.wait_vm(lambda t: t == ("wo", sp))
        b0 = 128 + sp * 8
        for q in range(4):
            e.I("v_lshl_or_b32 v%d, v%d, 16, v%d" % (b0 + q, b0 + 2 * q + 1, b0 + 2 * q))
        e.I("s_nop 1")
        for t in range(2):
            r = 16 + (t * 12 + sp) * 4
            d = 224 + 4 * t
            cc = "0" if sp == 0 else "v[%d:%d]" % (d, d + 3)
            e.I("v_mfma_f32_16x16x32_bf16 v[%d:%d], v[%d:%d], v[%d:%d], %s" % (d, d + 3, r, r + 3, b0, b0 + 3, cc))
    e.I("s_nop 15")
    for q in range(4):
        e.I("v_cvt_pk_bf16_f32 v%d, v%d, v%d" % (232 + q, 224 + 2 * q, 224 + 2 * q + 1))
    e.vmop("buffer_store_dwordx4 v[232:235], v12, s[16:19], s31 offen", "st")
    e.L("L_prep_end")
    e.I("s_endpgm")
    return e.text()


V_CDMA = 1
V_CA = 8
V_CB = 12
V_ST = 16
V_WL = 17
V_B = 20
NB = 5
D = 4
V_ACC = 40
V_QF = 88
V_PDMA = 88
V_PA = 92
V_PB = 96
V_T = 100
V_Q = 112
V_W = 224

S_C, S_P, S_WS, S_OUT = 8, 12, 16, 20
S_SEG = 24
S_W = 3
S_T = 44


def wreg(f):
    if f < 64:
        return "a[%d:%d]" % (4 * f, 4 * f + 3)
    r = V_W + 4 * (f - 64)
    return "v[%d:%d]" % (r, r + 3)


def gen_main():
    e = Em()
    e.L(KN)
    e.I("s_cmp_ge_u32 s2, %d" % NWG)
    e.I("s_cbranch_scc1 L_end")
    stamps = []

    def stamp(name):
        if not STAMP:
            return
        k = len(stamps)
        assert k < 21
        stamps.append(name)
        e.I("s_memrealtime s[%d:%d]" % (60 + 2 * k, 61 + 2 * k))
    stamp("entry")
    e.I("s_load_dwordx4 s[4:7], s[0:1], 0")
    e.I("s_load_dwordx2 s[44:45], s[0:1], 32")
    e.I("s_load_dwordx2 s[46:47], s[0:1], 48")
    T = V_T
    e.I("v_and_b32 v%d, 63, v0" % T)
    e.I("v_lshrrev_b32 v%d, 6, v0" % (T + 1))
    e.I("v_and_b32 v%d, 15, v0" % (T + 2))
    e.I("v_bfe_u32 v%d, v0, 4, 2" % (T + 3))
    e.I("v_readfirstlane_b32 s%d, v%d" % (S_W, T + 1))
    for r in range(3):
        e.I("v_mul_u32_u24 v%d, 192, v%d" % (T + 4, T + 1))
        e.I("v_add3_u32 v%d, v%d, %d, v%d" % (T + 4, T + 4, 64 if r else 0, T))
        if r == 2:
            e.I("v_add_u32 v%d, 64, v%d" % (T + 4, T + 4))
        e.I("v_mul_u32_u24 v%d, 1366, v%d" % (T + 5, T + 4))
        e.I("v_lshrrev_b32 v%d, 16, v%d" % (T + 5, T + 5))
        e.I("v_xor_b32 v%d, v%d, v%d" % (T + 4, T + 4, T + 5))
        e.I("v_lshlrev_b32 v%d, 4, v%d" % (T + 4, T + 4))
        e.I("v_subrev_u32 v%d, %d, v%d" % (V_PDMA + r, 1024 * r, T + 4))
    e.I("v_mul_u32_u24 v%d, 73728, v%d" % (V_WL, T + 1))
    e.I("v_lshl_add_u32 v%d, v%d, 4, v%d" % (V_WL, T, V_WL))
    e.I("s_mul_i32 s48, s2, %d" % (NU * UNIT))
    e.I("s_mul_i32 s49, s%d, 3072" % S_W)
    e.I("s_add_u32 s49, s49, %d" % PBASE)
    e.I("s_waitcnt lgkmcnt(0)")
    srd(e, S_P, 6, 7, P_BYTES)
    srd(e, S_WS, 46, 47, 2 * W_BYTES)
    srd(e, S_C, 4, 5, C_BYTES)
    srd(e, S_OUT, 44, 45, C_BYTES)

    def dma_p(u):
        e.I("s_add_u32 m0, s49, %d" % (u * UNIT))
        e.I("s_add_u32 s50, s48, %d" % (u * UNIT))
        for r in range(3):
            e.vmop("buffer_load_dwordx4 v%d, s[%d:%d], s50 offen offset:%d%s lds" % (V_PDMA + r, S_P, S_P + 3, 1024 * r, LDF),
                   ("p", u))

    def load_w(f, which):
        base = which * W_BYTES + 4096 * (f >> 2)
        if load_w.cur != base:
            e.I("s_mov_b32 s51, %d" % base)
            load_w.cur = base
        e.vmop("buffer_load_dwordx4 %s, v%d, s[%d:%d], s51 offen offset:%d" % (wreg(f), V_WL, S_WS, S_WS + 3, 1024 * (f & 3)),
               ("w", which, f))
    load_w.cur = None

    for u in range(NU):
        dma_p(u)
    for f in range(72):
        load_w(f, 0)

    for q in range(6):
        e.I("v_mul_u32_u24 v%d, 384, v%d" % (T + 4, T + 1))
        e.I("v_add_u32 v%d, %d, v%d" % (T + 4, 64 * q, T + 4))
        e.I("v_add_u32 v%d, v%d, v%d" % (T + 4, T + 4, T))
        e.I("v_mul_u32_u24 v%d, 683, v%d" % (T + 5, T + 4))
        e.I("v_lshrrev_b32 v%d, 16, v%d" % (T + 5, T + 5))
        e.I("v_xor_b32 v%d, v%d, v%d" % (T + 4, T + 4, T + 5))
        e.I("v_lshlrev_b32 v%d, 4, v%d" % (T + 4, T + 4))
        e.I("v_subrev_u32 v%d, %d, v%d" % (V_CDMA + q, 1024 * (q & 3), T + 4))
    e.I("s_mul_i32 s52, s2, %d" % NU)
    for u in range(NU):
        e.I("s_add_u32 s53, s52, %d" % u)
        e.I("s_mul_i32 s54, s53, 43691")
        e.I("s_lshr_b32 s54, s54, 19")
        e.I("s_mul_i32 s54, s54, 12")
        e.I("s_add_u32 s54, s54, s53")
        e.I("s_mul_i32 s%d, s54, %d" % (S_SEG + 2 * u, SEG))
        e.I("s_add_u32 s%d, s%d, %d" % (S_SEG + 2 * u + 1, S_SEG + 2 * u, 12 * SEG))
    e.I("s_mul_i32 s55, s%d, 6144" % S_W)

    def dma_c_ops(n):
        slot = n % NSLOT
        ops = []
        for q in range(6):
            def op(q=q):
                if q == 0 or q == 4:
                    e.I("s_add_u32 m0, s55, %d" % (slot * SEG + (4096 if q == 4 else 0)))
                    e.I("s_nop 0")
                e.vmop("buffer_load_dwordx4 v%d, s[%d:%d], s%d offen offset:%d%s lds"
                       % (V_CDMA + q, S_C, S_C + 3, S_SEG + n, 1024 * (q & 3), LDF), ("c", n))
            ops.append(op)
        return ops

    for n in (0, 1):
        for op in dma_c_ops(n):
            op()

    for sg in range(4):
        e.I("v_add_u32 v%d, %d, v%d" % (T + 4, 4 * sg, T + 3))
        e.I("v_xor_b32 v%d, v%d, v%d" % (T + 4, T + 4, T + 2))
        e.I("v_lshlrev_b32 v%d, 4, v%d" % (T + 4, T + 4))
        e.I("v_mul_u32_u24 v%d, 1536, v%d" % (T + 5, T + 2))
        e.I("v_add_u32 v%d, v%d, v%d" % (V_CA + sg, T + 4, T + 5))
        e.I("v_add_u32 v%d, %d, v%d" % (V_CB + sg, 3 * SEG, V_CA + sg))
        e.I("v_mul_u32_u24 v%d, 768, v%d" % (T + 5, T + 2))
        e.I("v_add_u32 v%d, v%d, v%d" % (V_PA + sg, T + 4, T + 5))
        e.I("v_add_u32 v%d, %d, v%d" % (V_PA + sg, PBASE, V_PA + sg))
        e.I("v_add_u32 v%d, %d, v%d" % (V_PB + sg, 6 * UNIT, V_PA + sg))
    e.I("v_mul_u32_u24 v%d, 1536, v%d" % (V_ST, T + 2))
    e.I("v_mul_u32_u24 v%d, 192, v%d" % (T + 4, T + 1))
    e.I("v_add_u32 v%d, v%d, v%d" % (V_ST, V_ST, T + 4))
    e.I("v_lshl_add_u32 v%d, v%d, 4, v%d" % (V_ST, T + 3, V_ST))

    steps = []
    for u in range(NU):
        for s in range(12):
            base = (V_PA if u < 6 else V_PB) + (s & 3)
            off = (u % 6) * UNIT + (s >> 2) * 256
            steps.append(dict(ph=1, u=u, s=s, grp=u, rd=(base, off), pre_read=[], pre=[], fill=[]))
    for n in range(NSEG):
        slot = n % NSLOT
        for dx in range(2):
            for s in range(12):
                base = (V_CA if slot < 3 else V_CB) + (s & 3)
                off = (slot % 3) * SEG + dx * 768 + (s >> 2) * 256
                steps.append(dict(ph=2, u=n // 2, n=n, dx=dx, s=s, grp=NU + 2 * n + dx, rd=(base, off),
                                  pre_read=[], pre=[], fill=[]))
    nst = len(steps)

    def stp(grp, s):
        return steps[grp * 12 + s]

    def acc(grp, b):
        r = V_ACC + 24 * (grp & 1) + 4 * b
        return r

    def p_ready():
        e.wait_vm(lambda t: t[0] == "p")
        e.I("s_barrier")
        stamp("p_ready")
    steps[0]["pre_read"].append(p_ready)
    stp(1, 0)["pre"].append(lambda: stamp("u1"))
    stp(NU, 0)["pre"].append(lambda: stamp("ph2"))
    stp(NU + 1, 0)["pre"].append(lambda: stamp("ph2g1"))

    for k, u in enumerate((2, 4, 6, 8)):
        n = 2 + k
        st = stp(u, 0)
        st["pre"].append(lambda: e.I("s_barrier"))
        ops = dma_c_ops(n)
        for q, op in enumerate(ops):
            stp(u, q // 2)["fill"].append(op)

    for u in range(NU):
        for j in range(3):
            for d in range(4):
                a = acc(u, 2 * j) + 2 * d
                ins = "v_cvt_pk_bf16_f32 v%d, v%d, v%d" % (V_Q + 12 * u + 4 * j + d, a, a + 1)
                stp(u + 1, 1 + j)["fill"].append(lambda ins=ins: e.I(ins))

    for s in range(12):
        for b in range(6):
            f = s * 6 + b
            if s < 11:
                stp(NU - 1, s + 1)["fill"].append(lambda f=f: load_w(f, 1))
            else:
                stp(NU, 0)["pre"].append(lambda f=f: load_w(f, 1))

    def unpack_ops(u):
        ops = []
        for b in range(6):
            j, beta = b >> 1, b & 1
            for r in range(4):
                src = V_Q + 12 * u + 4 * j + 2 * beta + (r >> 1)
                dst = V_QF + 4 * b + r
                if r & 1:
                    ins = "v_and_b32 v%d, 0xffff0000, v%d" % (dst, src)
                else:
                    ins = "v_lshlrev_b32 v%d, 16, v%d" % (dst, src)
                ops.append(lambda ins=ins: e.I(ins))
        return ops
    for u in range(NU):
        ops = unpack_ops(u)
        if u == 0:
            g = NU - 1
            for k, op in enumerate(ops):
                stp(g, 8 + k // 6)["fill"].append(op)
        else:
            g = NU + 4 * u - 1
            for k, op in enumerate(ops):
                stp(g, 5 + k // 4)["fill"].append(op)

    for n in range(NSEG):
        st = stp(NU + 2 * n, 0)

        def seg_ready(n=n):
            e.wait_vm(lambda t: t == ("c", n))
            e.I("s_barrier")
            if n >= 2 and (n % 2 == 0 or n >= 13):
                stamp("seg%d" % n)
        st["pre_read"].append(seg_ready)
        if 2 <= n and n + 4 < NSEG:
            ops = dma_c_ops(n + 4)
            t0 = (NU + 2 * n) * 12 - D
            for q, op in enumerate(ops):
                steps[t0 + 1 + q // 2]["fill"].append(op)

    def epi_ops(g):
        n, dx = (g - NU) // 2, (g - NU) % 2
        ops = []
        for j in range(3):
            a0 = acc(g, 2 * j)
            for d in range(4):
                ins = "v_cvt_pk_bf16_f32 v%d, v%d, v%d" % (a0 + d, a0 + 2 * d, a0 + 2 * d + 1)
                ops.append(lambda ins=ins: e.I(ins))
            ins = "buffer_store_dwordx4 v[%d:%d], v%d, s[%d:%d], s%d offen offset:%d%s" % (
                a0, a0 + 3, V_ST, S_OUT, S_OUT + 3, S_SEG + n, 768 * dx + 64 * j, STF)
            ops.append(lambda ins=ins: e.vmop(ins, ("st",)))
        return ops
    ngrp = NU + 2 * NSEG
    for g in range(NU, ngrp - 1):
        ops = epi_ops(g)
        for k, op in enumerate(ops):
            stp(g + 1, 1 + k // 5)["fill"].append(op)

    def emit_read(t):
        st = steps[t]
        for f in st["pre_read"]:
            f()
        base, off = st["rd"]
        r = V_B + 4 * (t % NB)
        e.lgop("ds_read_b128 v[%d:%d], v%d offset:%d" % (r, r + 3, base, off), t)

    for t in range(D):
        emit_read(t)
    for t, st in enumerate(steps):
        e.C("step %d ph%d grp %d s %d" % (t, st["ph"], st["grp"], st["s"]))
        e.wait_lg(lambda x: x == t)
        for f in st["pre"]:
            f()
        fills = list(st["fill"])
        g, s = st["grp"], st["s"]
        br = V_B + 4 * (t % NB)
        nf = len(fills)
        per = (nf + 4) // 5
        for b in range(6):
            f = s * 6 + b
            which = 0 if st["ph"] == 1 else 1
            e.wait_vm(lambda x: x == ("w", which, f))
            a = acc(g, b)
            if s == 0:
                cc = "0" if st["ph"] == 1 else "v[%d:%d]" % (V_QF + 4 * b, V_QF + 4 * b + 3)
            else:
                cc = "v[%d:%d]" % (a, a + 3)
            e.I("v_mfma_f32_16x16x32_bf16 v[%d:%d], %s, v[%d:%d], %s" % (a, a + 3, wreg(f), br, br + 3, cc))
            if b == 0:
                if t + D < nst:
                    emit_read(t + D)
            else:
                for _ in range(per):
                    if fills:
                        fills.pop(0)()
        assert not fills
    e.I("s_nop 7")
    e.I("s_nop 1")
    for op in epi_ops(ngrp - 1):
        op()
    if STAMP:
        stamp("issued")
        e.I("s_waitcnt vmcnt(0)")
        stamp("end")
        e.I("s_waitcnt lgkmcnt(0)")
        e.I("v_mov_b32 v20, 0")
        for k in range(len(stamps)):
            e.I("v_writelane_b32 v20, s%d, %d" % (60 + 2 * k, k))
        e.I("s_mov_b32 s18, %d" % (8 << 20))
        e.I("v_and_b32 v21, 63, v0")
        e.I("v_lshlrev_b32 v21, 2, v21")
        e.I("s_lshl_b32 s56, s2, 2")
        e.I("s_add_u32 s56, s56, s%d" % S_W)
        e.I("s_lshl_b32 s56, s56, 8")
        e.I("s_add_u32 s56, s56, %d" % (1 << 20))
        e.I("buffer_store_dword v20, v21, s[16:19], s56 offen")
        sys.stderr.write("stamps: " + ",".join(stamps) + "\n")
        open("stamps.txt", "w").write(",".join(stamps))
    e.L("L_end")
    e.I("s_endpgm")
    return e.text()


HEADER = open("standalone__detection_seg_fpn_lateral__vision.s.ref").read().split("; Override")[0]


def kd(name, vgpr, accum, sgpr):
    return """.amdhsa_kernel %s
  .amdhsa_next_free_vgpr %d
  .amdhsa_next_free_sgpr %d
  .amdhsa_accum_offset %d
  .amdhsa_group_segment_fixed_size 0
  .amdhsa_kernarg_size 56
  .amdhsa_user_sgpr_count 2
  .amdhsa_user_sgpr_kernarg_segment_ptr 1
  .amdhsa_system_sgpr_workgroup_id_x 1
.end_amdhsa_kernel
""" % (name, vgpr, sgpr, accum)


def main():
    out = HEADER
    out += "; @launch kernel=prep_kernel grid=(72,1,1) block=(256,1,1) lds=0\n"
    out += "; @launch kernel=%s grid=(256,1,1) block=(256,1,1) lds=163840\n" % KN
    out += '.amdgcn_target "amdgcn-amd-amdhsa--gfx950"\n.text\n'
    out += ".globl prep_kernel\n.p2align 8\n.type prep_kernel,@function\n"
    out += gen_prep()
    out += ".globl %s\n.p2align 8\n.type %s,@function\n" % (KN, KN)
    out += gen_main()
    out += '.section .rodata,"a"\n.p2align 6\n'
    out += kd("prep_kernel", 256, 256, 64)
    out += ".p2align 6\n"
    out += kd(KN, 512, 256, 102)
    path = sys.argv[1] if len(sys.argv) > 1 else "standalone__detection_seg_fpn_lateral__vision.s"
    open(path, "w").write(out)


if __name__ == "__main__":
    main()
```

```python
import sys, os

def opt(name, default):
    v = os.environ.get(name)
    if v is None:
        return default
    return type(default)(v)

STAMP = opt("STAMP", 0)
CLK = "s_memtime" if STAMP == 2 else "s_memrealtime"
LDF = opt("LDF", "")
STF = opt("STF", "")
CODEPF = opt("CODEPF", 1)
NBUF = opt("NBUF", 3)
DROP = opt("DROP", "").split(",")
if LDF: LDF = " " + LDF
if STF: STF = " " + STF

KN = "standalone__detection_seg_fpn_lateral__vision_kernel"
C_BYTES = 113246208
P_BYTES = 28311552
W_BYTES = 294912
SEG = 24576
BLK = 12288
ROW = 294912
PAIR = 2 * SEG
NWG = 256
NU = 9
PBASE = 2 * SEG
OOB = 0x80000000
LDS_DUMMY = 0x30000
NITEM = 144
NDONE = 36

class Prog:
    def __init__(self):
        self.blocks = {}
        self.order = []
        self.cond = {}
        self.cur = None
        self.nw = 0

    def block(self, name, cond=None):
        self.cur = []
        assert name not in self.blocks
        self.blocks[name] = self.cur
        self.order.append(name)
        self.cond[name] = cond

    def I(self, s):
        self.cur.append(("i", s))

    def L(self, s):
        self.cur.append(("l", s))

    def C(self, s):
        self.cur.append(("c", s))

    def vm(self, s, tagf):
        self.cur.append(("vm", s, tagf))

    def lg(self, s, tagf):
        self.cur.append(("lg", s, tagf))

    def wvm(self, predf):
        self.cur.append(("wvm", predf, self.nw)); self.nw += 1

    def wlg(self, predf):
        self.cur.append(("wlg", predf, self.nw)); self.nw += 1

    def syncvm(self):
        self.cur.append(("fvm",))

    def synclg(self):
        self.cur.append(("flg",))

    def stamp(self, namef):
        if STAMP:
            self.cur.append(("st", namef))

    def resolve(self, traces):
        INF = 10 ** 9
        need = {}
        for trace in traces:
            q = {"vm": [], "lg": []}
            for name, env in trace:
                for it in self.blocks[name]:
                    k = it[0]
                    if k in ("vm", "lg"):
                        q[k].append(it[2](env))
                    elif k in ("wvm", "wlg"):
                        lst = q[k[1:]]
                        n = INF
                        for i in range(len(lst) - 1, -1, -1):
                            if it[1](env, lst[i]):
                                n = len(lst) - 1 - i
                                break
                        need[it[2]] = min(need.get(it[2], INF), n)
        cap = {"wvm": 63, "wlg": 15}
        useful = set()
        for trace in traces:
            cnt = {"vm": 0, "lg": 0}
            done = {"vm": 0, "lg": 0}
            q = {"vm": [], "lg": []}
            for name, env in trace:
                for it in self.blocks[name]:
                    k = it[0]
                    if k in ("vm", "lg"):
                        cnt[k] += 1
                        q[k].append(it[2](env))
                    elif k == "fvm":
                        done["vm"] = cnt["vm"]
                    elif k == "flg":
                        done["lg"] = cnt["lg"]
                    elif k in ("wvm", "wlg"):
                        c = k[1:]
                        n = need.get(it[2], INF)
                        if n >= INF:
                            continue
                        n = min(n, cap[k])
                        lst = q[c]
                        idx = -1
                        for i in range(len(lst) - 1, done[c] - 1, -1):
                            if it[1](env, lst[i]):
                                idx = i
                                break
                        if idx >= 0:
                            useful.add(it[2])
                            done[c] = max(done[c], idx + 1)
        self.need = need
        self.useful = useful
        self.cap = cap

    def stamp_names(self, trace):
        names = []
        for name, env in trace:
            for it in self.blocks[name]:
                if it[0] == "st":
                    names.append(it[1](env))
        return names

    def text(self):
        out = []
        for name in self.order:
            out.append("    ; ---- block %s" % name)
            for it in self.blocks[name]:
                k = it[0]
                if k in ("i", "vm", "lg"):
                    out.append("    " + it[1])
                elif k == "l":
                    out.append(it[1] + ":")
                elif k == "c":
                    out.append("    ; " + it[1])
                elif k == "fvm":
                    out.append("    s_waitcnt vmcnt(0)")
                elif k == "flg":
                    out.append("    s_waitcnt lgkmcnt(0)")
                elif k in ("wvm", "wlg"):
                    if it[2] in self.useful:
                        n = min(self.need[it[2]], self.cap[k])
                        out.append("    s_waitcnt %s(%d)" % ("vmcnt" if k == "wvm" else "lgkmcnt", n))
                elif k == "st":
                    out.append("    s_mov_b32 m0, s%d" % S_STC)
                    out.append("    s_add_u32 s%d, s%d, 1" % (S_STC, S_STC))
                    out.append("    v_writelane_b32 v%d, s%d, m0" % (V_STAMP, S_STV))
                    out.append("    %s s[%d:%d]" % (CLK, S_STV, S_STV + 1))
        return "\n".join(out) + "\n"


V_CDMA = 0
V_CB = 6
V_XW = 10
V_XR = 11
V_ST = 12
V_ST2 = 13
V_ST3 = 14
V_WL = 15
NB = 4
D = 3
V_B = 16
V_PB = 32
V_ACC = 36
V_QF = 84
V_Q = 108
V_PB2 = 216
V_POLL = 220
V_ONE = 221
V_STAMP = 223
V_W = 224
T_LANE, T_W, T_P, T_G = 84, 85, 86, 87
T_A, T_B2, T_C = 88, 89, 90
T_ODMA = 66
T_TR = 92
T_WLA = 74
T_PA = 98
T_PF = 76
PD = 36

S_W = 3
S_C, S_P, S_WS, S_OUT, S_WO, S_WL, S_DBG = 8, 12, 16, 20, 24, 28, 32
S_W6 = 36
S_PSRC = 37
S_T0, S_T1, S_T2 = 38, 39, 40
S_SEGQ = 41
S_UP1, S_U0, S_U0R, S_U1, S_U2, S_UL = 47, 48, 49, 50, 51, 52
S_CX = 53
S_JS0, S_JS1, S_JL = 54, 55, 56
S_DN = 57
S_PI = 58
S_QI = 59
S_CNT = 60
S_WOFF = 61
S_DONE = 62
S_SPIN = 63
S_STC = 64
S_STV = 66
S_EX = 68
S_PJ = 70
S_PJL = 71
S_PW = 86
S_PO = 87
XB = 6 * SEG


def wreg(f, h=None):
    if f < 64:
        p, r = "a", 4 * f
    else:
        p, r = "v", V_W + 4 * (f - 64)
    if h is None:
        return "%s[%d:%d]" % (p, r, r + 3)
    return "%s[%d:%d]" % (p, r + 2 * h, r + 2 * h + 1)


def accb(buf):
    return V_ACC + 24 * buf


def srd(e, d, lo, hi, nbytes):
    e.I("s_mov_b32 s%d, s%d" % (d, lo))
    e.I("s_mov_b32 s%d, s%d" % (d + 1, hi))
    e.I("s_mov_b32 s%d, %d" % (d + 2, nbytes))
    e.I("s_mov_b32 s%d, 0x00020000" % (d + 3))


PJOB = {"p01": (0, 2 * SEG), "p23": (2, 3 * SEG), "p4": (4, 6 * SEG), "p56": (5, 4 * SEG), "p78": (7, 5 * SEG)}


def unit_lds(t):
    if t <= 3:
        return 2 * SEG + t * BLK, t & 1
    if t == 4:
        return 6 * SEG, 0
    return 4 * SEG + (t - 5) * BLK, (t - 5) & 1


def gen():
    e = Prog()
    K = lambda t: (lambda env: t)
    uid = [0]

    def I_(s):
        return lambda: e.I(s)

    def cond_begin(cond):
        uid[0] += 1
        n = uid[0]
        e.I("s_cmp_%s_u32 s2, %d" % ("ge" if cond == "prod" else "lt", NITEM))
        e.I("s_cbranch_scc1 L_skip%d" % n)
        e.block("c%d" % n, cond)
        return n

    def cond_end(n):
        e.block("s%d" % n)
        e.L("L_skip%d" % n)

    e.block("start")
    e.L(KN)
    e.I("s_cmp_ge_u32 s2, %d" % NWG)
    e.I("s_cbranch_scc1 L_end")
    if STAMP:
        e.I("s_mov_b32 s%d, 0" % S_STC)
        e.I("v_mov_b32 v%d, 0" % V_STAMP)
        e.I("%s s[%d:%d]" % (CLK, S_STV, S_STV + 1))
    e.I("s_load_dwordx8 s[72:79], s[0:1], 0")
    e.I("s_load_dwordx4 s[80:83], s[0:1], 32")
    e.I("s_load_dwordx2 s[84:85], s[0:1], 48")
    e.I("v_and_b32 v%d, 63, v0" % T_LANE)
    e.I("v_lshrrev_b32 v%d, 6, v0" % T_W)
    e.I("v_and_b32 v%d, 15, v0" % T_P)
    e.I("v_bfe_u32 v%d, v0, 4, 2" % T_G)
    e.I("v_readfirstlane_b32 s%d, v%d" % (S_W, T_W))
    BUFSLOT = [5, 0, 1][:NBUF]

    def dma_cluster(vbase, q0, srdr, soff, ldsbase_s, ldsimm, tagf, flags, setup=None, each=False):
        ops = []
        uid[0] += 1
        mid = uid[0]
        for k in range(3):
            def op(k=k):
                if k == 0 or each:
                    if setup:
                        setup()
                    e.I("s_add_u32 m0, s%d, %d ; m0id=%d" % (ldsbase_s, ldsimm + 1024 * q0, mid))
                    e.I("s_nop 0")
                e.vm("buffer_load_dwordx4 v%d, s[%d:%d], s%d offen offset:%d%s lds ; m0id=%d"
                     % (vbase + q0 + k, srdr, srdr + 3, soff, 1024 * k, flags, mid), tagf)
            ops.append(op)
        return ops

    def dma_wo(s):
        e.I("s_mov_b32 s%d, %d" % (S_T0, s * SEG))
        for q0 in (0, 3):
            for op in dma_cluster(T_ODMA, q0, S_WO, S_T0, S_W6, BUFSLOT[s % NBUF] * SEG, K(("wo", s)), ""):
                op()

    def job_ops(name, each=False):
        ops = []
        for q0 in (0, 3):
            if name[0] == "p":
                u0, lds = PJOB[name]

                def setup(u0=u0, lds=lds):
                    e.I("s_add_u32 s%d, s%d, %d" % (S_PJ, S_PSRC, u0 * BLK))
                    if name == "p4":
                        e.I("s_cmp_lt_u32 s%d, 2" % S_W)
                        e.I("s_cselect_b32 s%d, s%d, 0x%x" % (S_PJ, S_PJ, OOB))
                        e.I("s_cselect_b32 s%d, s%d, 0x%x" % (S_PJL, S_W6, LDS_DUMMY - lds))
                ops += dma_cluster(V_CDMA, q0, S_P, S_PJ, S_PJL if name == "p4" else S_W6, lds, K((name,)), LDF, setup, each)
            else:
                n = int(name[1:])
                ops += dma_cluster(V_CDMA, q0, S_C, S_SEGQ + n, S_W6, n * SEG, K(("c", n)), LDF, None, each)
        return ops

    e.I("s_bfe_u32 s%d, s2, 0x50003" % S_T2)
    if CODEPF:
        e.I("s_getpc_b64 s[%d:%d]" % (S_EX, S_EX + 1))
        e.I("s_lshl_b32 s%d, s%d, 8" % (S_T0, S_T2))
        e.I("v_add_u32 v%d, s%d, v0" % (T_PF, S_T0))
        e.I("v_and_b32 v%d, 0x7ff, v%d" % (T_PF, T_PF))
        e.I("v_lshlrev_b32 v%d, 4, v%d" % (T_PF, T_PF))
        e.I("v_mov_b32 v%d, s%d" % (T_PF + 1, S_EX + 1))
        e.I("v_add_co_u32 v%d, vcc, s%d, v%d" % (T_PF, S_EX, T_PF))
        e.I("v_addc_co_u32 v%d, vcc, 0, v%d, vcc" % (T_PF + 1, T_PF + 1))
        e.vm("global_load_dwordx4 v[80:83], v[%d:%d], off" % (T_PF, T_PF + 1), K(("pf",)))
    e.I("v_lshlrev_b32 v%d, 4, v0" % T_WLA)
    e.I("s_mul_i32 s%d, s%d, 9216" % (S_T2, S_T2))
    e.I("s_mul_i32 s%d, s%d, 6144" % (S_W6, S_W))
    e.I("s_mul_i32 s%d, s2, %d" % (S_PSRC, NU * BLK))
    e.I("v_mul_u32_u24 v%d, 384, v%d" % (T_C, T_W))
    e.I("v_add_u32 v%d, v%d, v%d" % (T_C, T_C, T_LANE))
    for q in range(6):
        e.I("v_add_u32 v%d, %d, v%d" % (T_A, 64 * q, T_C))
        e.I("v_mul_u32_u24 v%d, 683, v%d" % (T_B2, T_A))
        e.I("v_lshrrev_b32 v%d, 16, v%d" % (T_B2, T_B2))
        e.I("v_xor_b32 v%d, v%d, v%d" % (T_B2, T_A, T_B2))
        e.I("v_lshlrev_b32 v%d, 4, v%d" % (T_B2, T_B2))
        e.I("v_subrev_u32 v%d, %d, v%d" % (V_CDMA + q, 1024 * (q % 3), T_B2))
    e.synclg()
    srd(e, S_WO, 78, 79, W_BYTES)
    if WOPF:
        for i in range(3):
            e.vm("buffer_load_dwordx4 v[80:83], v%d, s[%d:%d], s%d offen" % (T_WLA, S_WO, S_WO + 3, S_T2), K(("pf",)))
            if i < 2:
                e.I("s_add_u32 s%d, s%d, 4096" % (S_T2, S_T2))
    srd(e, S_P, 74, 75, P_BYTES)
    n = cond_begin("prod")
    srd(e, S_WL, 76, 77, W_BYTES)
    e.I("s_lshr_b32 s%d, s2, 2" % S_T1)
    e.I("s_mul_i32 s%d, s%d, 21846" % (S_T0, S_T1))
    e.I("s_lshr_b32 s%d, s%d, 16" % (S_T0, S_T0))
    e.I("s_mul_i32 s%d, s%d, 3" % (S_T2, S_T0))
    e.I("s_sub_u32 s%d, s%d, s%d" % (S_T1, S_T1, S_T2))
    e.I("s_and_b32 s%d, s2, 3" % S_PW)
    e.I("s_mul_i32 s%d, s%d, 72" % (S_PO, S_PW))
    e.I("s_lshl_b32 s%d, s%d, 1" % (S_T2, S_T2))
    e.I("s_add_u32 s%d, s%d, s%d" % (S_PO, S_PO, S_T2))
    e.I("s_lshl_b32 s%d, s%d, 1" % (S_T2, S_T1))
    e.I("s_add_u32 s%d, s%d, s%d" % (S_PO, S_PO, S_T2))
    e.I("s_and_b32 s%d, s%d, 1" % (S_T2, S_W))
    e.I("s_add_u32 s%d, s%d, s%d" % (S_PO, S_PO, S_T2))
    e.I("s_lshl_b32 s%d, s%d, 10" % (S_PO, S_PO))
    e.I("s_lshr_b32 s%d, s%d, 1" % (S_T2, S_W))
    e.I("s_lshl_b32 s%d, s%d, 3" % (S_T2, S_T2))
    e.I("s_add_u32 s%d, s%d, s%d" % (S_PO, S_PO, S_T2))
    e.I("s_mul_i32 s%d, s%d, %d" % (S_T0, S_T0, SEG))
    for q0 in (0, 3):
        for op in dma_cluster(V_CDMA, q0, S_WL, S_T0, S_W6, 4 * SEG, K(("wl",)), ""):
            op()
    e.I("s_and_b32 s%d, s%d, 1" % (S_T2, S_PW))
    e.I("s_add_u32 s%d, s%d, s%d" % (S_T1, S_T1, S_T2))
    e.I("s_cmp_eq_u32 s%d, 3" % S_T1)
    e.I("s_cselect_b32 s%d, 0, s%d" % (S_T1, S_T1))
    e.I("s_lshl_b32 s%d, s%d, 6" % (S_T1, S_T1))
    e.I("s_mul_i32 s%d, s%d, 192" % (S_T2, S_PW))
    e.I("s_add_u32 s%d, s%d, s%d" % (S_T1, S_T1, S_T2))
    e.I("s_mul_i32 s%d, s%d, %d" % (S_T2, S_W, 6 * BLK))
    e.I("s_add_u32 s%d, s%d, s%d" % (S_T1, S_T1, S_T2))
    e.I("v_lshrrev_b32 v%d, 2, v%d" % (T_A, T_LANE))
    e.I("v_mul_u32_u24 v%d, 768, v%d" % (T_A, T_A))
    e.I("v_and_b32 v%d, 3, v%d" % (T_B2, T_LANE))
    e.I("v_lshl_add_u32 v%d, v%d, 4, v%d" % (T_A, T_B2, T_A))
    for i in range(6):
        uid[0] += 1
        e.I("s_add_u32 m0, s%d, %d ; m0id=%d" % (S_W6, 3 * SEG + 1024 * i, uid[0]))
        e.I("s_nop 0")
        e.vm("buffer_load_dwordx4 v%d, s[%d:%d], s%d offen lds ; m0id=%d" % (T_A, S_WO, S_WO + 3, S_T1, uid[0]), K(("wl",)))
        if i < 5:
            e.I("s_add_u32 s%d, s%d, %d" % (S_T1, S_T1, BLK))
    cond_end(n)
    for nm in FIRST:
        for op in job_ops(nm):
            op()
    e.I("v_mul_u32_u24 v%d, 192, v%d" % (T_C, T_W))
    for q in range(6):
        e.I("v_add_u32 v%d, %d, v%d" % (T_A, 64 * q, T_LANE))
        e.I("v_mul_u32_u24 v%d, 5462, v%d" % (T_B2, T_A))
        e.I("v_lshrrev_b32 v%d, 16, v%d" % (T_B2, T_B2))
        e.I("v_lshlrev_b32 v%d, 4, v%d" % (T_A, T_A))
        e.I("v_mul_u32_u24 v%d, 576, v%d" % (T_B2, T_B2))
        e.I("v_add3_u32 v%d, v%d, v%d, v%d" % (T_A, T_A, T_B2, T_C))
        e.I("v_subrev_u32 v%d, %d, v%d" % (T_ODMA + q, 1024 * (q % 3), T_A))
    srd(e, S_C, 72, 73, C_BYTES)
    srd(e, S_OUT, 80, 81, C_BYTES)
    srd(e, S_DBG, 82, 83, 256)
    srd(e, S_WS, 84, 85, (8 << 20) if STAMP else W_BYTES)

    e.I("v_lshrrev_b32 v%d, 2, v%d" % (T_A, T_P))
    e.I("v_lshl_add_u32 v%d, v%d, 3, v%d" % (T_A, T_G, T_A))
    e.I("v_mul_u32_u24 v%d, 192, v%d" % (T_A, T_A))
    e.I("v_and_b32 v%d, 3, v%d" % (T_B2, T_P))
    e.I("v_lshl_add_u32 v%d, v%d, 4, v%d" % (T_A, T_B2, T_A))
    e.I("v_add_u32 v%d, s%d, v%d" % (T_A, S_W6, T_A))
    e.I("s_and_b32 s%d, s%d, 1" % (S_T0, S_W))
    e.I("s_lshl_b32 s%d, s%d, 6" % (S_T1, S_T0))
    e.I("v_add_u32 v%d, s%d, v%d" % (T_TR, S_T1, T_A))
    e.I("v_add_u32 v%d, 64, v%d" % (T_TR + 1, T_TR))
    e.I("s_xor_b32 s%d, s%d, 1" % (S_T2, S_T0))
    e.I("s_lshl_b32 s%d, s%d, 7" % (S_T2, S_T2))
    e.I("v_add_u32 v%d, s%d, v%d" % (T_TR + 2, S_T2, T_A))
    for j in range(3):
        e.I("v_add_u32 v%d, %d, v%d" % (T_TR + 3 + j, 3 * SEG, T_TR + j))
    e.I("v_and_b32 v%d, 7, v%d" % (T_A, T_P))
    e.I("v_mul_u32_u24 v%d, 1536, v%d" % (T_A, T_A))
    e.I("v_lshrrev_b32 v%d, 3, v%d" % (T_B2, T_P))
    e.I("v_lshl_add_u32 v%d, v%d, 6, v%d" % (T_A, T_B2, T_A))
    e.I("v_lshl_add_u32 v%d, v%d, 4, v%d" % (T_A, T_G, T_A))
    e.I("v_add3_u32 v%d, v%d, v%d, s%d" % (V_ST, T_A, T_C, S_T1))
    e.I("v_add_u32 v%d, %d, v%d" % (V_ST2, 8 * 1536, V_ST))
    e.I("s_lshl_b32 s%d, s%d, 2" % (S_T2, S_T0))
    e.I("v_add_u32 v%d, s%d, v%d" % (T_A, S_T2, T_G))
    e.I("v_and_b32 v%d, 7, v%d" % (T_B2, T_P))
    e.I("v_xor_b32 v%d, v%d, v%d" % (T_A, T_A, T_B2))
    e.I("v_lshlrev_b32 v%d, 4, v%d" % (T_A, T_A))
    e.I("v_lshl_add_u32 v%d, v%d, 7, v%d" % (T_A, T_P, T_A))
    e.I("s_lshr_b32 s%d, s%d, 1" % (S_T1, S_W))
    e.I("s_lshl_b32 s%d, s%d, 11" % (S_T2, S_T1))
    e.I("s_add_u32 s%d, s%d, %d" % (S_T2, S_T2, XB))
    e.I("v_add_u32 v%d, s%d, v%d" % (V_XW, S_T2, T_A))
    e.I("v_lshrrev_b32 v%d, 3, v%d" % (T_A, T_LANE))
    e.I("v_and_b32 v%d, 7, v%d" % (T_B2, T_LANE))
    e.I("v_xor_b32 v%d, v%d, v%d" % (T_C, T_A, T_B2))
    e.I("v_lshlrev_b32 v%d, 4, v%d" % (T_C, T_C))
    e.I("s_lshl_b32 s%d, s%d, 3" % (S_T0, S_T0))
    e.I("v_add_u32 v%d, s%d, v%d" % (T_A, S_T0, T_A))
    e.I("v_lshl_add_u32 v%d, v%d, 7, v%d" % (T_C, T_A, T_C))
    e.I("v_add_u32 v%d, s%d, v%d" % (V_XR, S_T2, T_C))
    e.I("v_mul_u32_u24 v%d, 1536, v%d" % (T_A, T_A))
    e.I("v_lshl_add_u32 v%d, v%d, 4, v%d" % (T_A, T_B2, T_A))
    e.I("s_mul_i32 s%d, s%d, 384" % (S_T1, S_T1))
    e.I("s_add_u32 s%d, s%d, 128" % (S_T1, S_T1))
    e.I("v_add_u32 v%d, s%d, v%d" % (V_ST3, S_T1, T_A))
    e.I("v_lshrrev_b32 v%d, 1, v%d" % (T_C, T_P))
    for sg in range(4):
        e.I("v_add_u32 v%d, %d, v%d" % (T_A, 4 * sg, T_G))
        e.I("v_xor_b32 v%d, v%d, v%d" % (T_B2, T_A, T_P))
        e.I("v_lshlrev_b32 v%d, 4, v%d" % (T_B2, T_B2))
        e.I("v_mul_u32_u24 v%d, 1536, v%d" % (V_CB + sg, T_P))
        e.I("v_add_u32 v%d, v%d, v%d" % (V_CB + sg, V_CB + sg, T_B2))
        e.I("v_xor_b32 v%d, v%d, v%d" % (T_B2, T_A, T_C))
        e.I("v_lshlrev_b32 v%d, 4, v%d" % (T_B2, T_B2))
        e.I("v_mul_u32_u24 v%d, 768, v%d" % (T_A, T_P))
        e.I("v_add_u32 v%d, v%d, v%d" % (T_A, T_A, T_B2))
        e.I("v_add_u32 v%d, %d, v%d" % (V_PB + sg, 2 * SEG, T_A))
        e.I("v_add_u32 v%d, %d, v%d" % (V_PB2 + sg, 4 * SEG, T_A))
    e.I("v_mul_u32_u24 v%d, 73728, v%d" % (V_WL, T_W))
    e.I("v_lshl_add_u32 v%d, v%d, 4, v%d" % (V_WL, T_LANE, V_WL))
    e.I("v_mov_b32 v%d, 1" % V_ONE)
    e.I("s_lshl_b32 s%d, s%d, 6" % (S_DONE, S_W))
    e.I("s_mul_i32 s%d, s2, %d" % (S_T0, NU))
    for u in range(3):
        e.I("s_add_u32 s%d, s%d, %d" % (S_T1, S_T0, u))
        e.I("s_mul_i32 s%d, s%d, 43691" % (S_T2, S_T1))
        e.I("s_lshr_b32 s%d, s%d, 19" % (S_T2, S_T2))
        e.I("s_mul_i32 s%d, s%d, 12" % (S_T2, S_T2))
        if u == 2:
            e.I("s_sub_u32 s%d, s%d, s%d" % (S_CX, S_T1, S_T2))
        e.I("s_add_u32 s%d, s%d, s%d" % (S_T2, S_T2, S_T1))
        e.I("s_mul_i32 s%d, s%d, %d" % (S_SEGQ + 2 * u, S_T2, SEG))
        e.I("s_add_u32 s%d, s%d, %d" % (S_SEGQ + 2 * u + 1, S_SEGQ + 2 * u, ROW))
    e.I("s_mov_b32 s%d, 0x%x" % (S_UP1, OOB))
    e.I("s_mov_b32 s%d, s%d" % (S_U0, S_SEGQ))
    e.I("s_mov_b32 s%d, s%d" % (S_U0R, S_SEGQ + 1))
    e.I("s_mov_b32 s%d, s%d" % (S_U1, S_SEGQ + 2))
    e.I("s_mov_b32 s%d, s%d" % (S_U2, S_SEGQ + 4))
    e.I("s_mov_b32 s%d, s%d" % (S_UL, S_SEGQ + 4))
    e.I("s_mov_b32 s%d, s%d" % (S_JS0, S_SEGQ + 4))
    e.I("s_mov_b32 s%d, s%d" % (S_JS1, S_SEGQ + 5))
    e.I("s_add_u32 s%d, s%d, %d" % (S_JL, S_W6, 2 * PAIR))
    e.I("s_mov_b32 s%d, %d" % (S_DN, PAIR))
    e.I("s_mov_b32 s%d, 0" % S_PI)
    e.I("s_mov_b32 s%d, 12" % S_QI)
    e.I("s_mov_b32 s%d, 0" % S_CNT)

    for s in range(NBUF):
        dma_wo(s)
    n = cond_begin("prod")
    e.I("v_lshrrev_b32 v%d, 2, v%d" % (T_A, T_P))
    e.I("v_and_b32 v%d, 3, v%d" % (T_B2, T_P))
    e.I("v_lshl_add_u32 v%d, v%d, 3, v%d" % (T_C, T_G, T_A))
    e.I("v_lshlrev_b32 v%d, 6, v%d" % (T_C, T_C))
    e.I("v_lshl_add_u32 v%d, v%d, 4, v%d" % (T_C, T_B2, T_C))
    e.I("s_and_b32 s%d, s%d, 1" % (S_T0, S_W))
    e.I("s_lshl_b32 s%d, s%d, 3" % (S_T0, S_T0))
    e.I("s_add_u32 s%d, s%d, %d" % (S_T0, S_T0, 3 * SEG))
    e.I("v_add_u32 v%d, s%d, v%d" % (T_PA + 4, S_T0, T_C))
    e.I("v_lshl_add_u32 v%d, v%d, 3, v%d" % (T_A, T_A, T_B2))
    e.I("s_lshr_b32 s%d, s%d, 1" % (S_T0, S_W))
    e.I("s_lshl_b32 s%d, s%d, 2" % (S_T0, S_T0))
    e.I("v_add_u32 v%d, s%d, v%d" % (T_A, S_T0, T_A))
    e.I("v_lshrrev_b32 v%d, 1, v%d" % (T_B2, T_A))
    e.I("v_mul_u32_u24 v%d, 768, v%d" % (T_C, T_A))
    e.I("v_add_u32 v%d, %d, v%d" % (T_C, 4 * SEG, T_C))
    for sg in range(4):
        r = T_PA + sg
        e.I("v_add_u32 v%d, %d, v%d" % (r, 4 * sg, T_G))
        e.I("v_xor_b32 v%d, v%d, v%d" % (r, r, T_B2))
        e.I("v_lshl_add_u32 v%d, v%d, 4, v%d" % (r, r, T_C))
    e.I("v_lshlrev_b32 v%d, 4, v%d" % (T_PA + 5, T_LANE))
    e.wvm(lambda env, t: t == ("wl",))
    e.I("s_barrier")
    for sp in range(12):
        r = V_Q + 8 * sp
        e.lg("ds_read_b128 v[%d:%d], v%d offset:%d" % (r, r + 3, T_PA + (sp & 3), 256 * (sp >> 2)), K(("pr", sp)))
        for h in range(2):
            e.lg("ds_read_b64_tr_b16 v[%d:%d], v%d offset:%d" % (r + 4 + 2 * h, r + 5 + 2 * h, T_PA + 4, 2048 * sp + 256 * h),
                 K(("pr", sp)))
    for sp in range(12):
        r = V_Q + 8 * sp
        e.wlg(lambda env, t, sp=sp: t == ("pr", sp))
        cc = "0" if sp == 0 else "v[%d:%d]" % (PD, PD + 3)
        e.I("v_mfma_f32_16x16x32_bf16 v[%d:%d], v[%d:%d], v[%d:%d], %s" % (PD, PD + 3, r, r + 3, r + 4, r + 7, cc))
    e.I("s_nop 7")
    e.I("s_nop 1")
    e.I("v_cvt_pk_bf16_f32 v%d, v%d, v%d" % (PD + 4, PD, PD + 1))
    e.I("v_cvt_pk_bf16_f32 v%d, v%d, v%d" % (PD + 5, PD + 2, PD + 3))
    e.vm("buffer_store_dwordx2 v[%d:%d], v%d, s[%d:%d], s%d offen sc1"
         % (PD + 4, PD + 5, T_PA + 5, S_WS, S_WS + 3, S_PO), K(("pst",)))
    cond_end(n)

    def signal():
        n = cond_begin("prod")
        e.wvm(lambda env, t: t == ("pst",))
        e.I("s_barrier")
        e.I("s_cmp_lg_u32 s%d, 0" % S_W)
        e.I("s_cbranch_scc1 L_nosig")
        e.I("s_lshl_b32 s%d, s%d, 6" % (S_T1, S_PW))
        e.I("s_mov_b64 exec, 1")
        e.I("buffer_atomic_add v%d, off, s[%d:%d], s%d sc1" % (V_ONE, S_DBG, S_DBG + 3, S_T1))
        e.I("s_mov_b64 exec, -1")
        e.L("L_nosig")
        cond_end(n)

    early = dict(EARLY)
    for s in range(12):
        slot = BUFSLOT[s % NBUF]
        e.wvm(lambda env, t, s=s: t == ("wo", s))
        if STAMPWO:
            e.stamp(K("w%d" % s))
        for b in range(6):
            j, beta = b >> 1, b & 1
            for h in range(2):
                base = T_TR + j + (3 if slot >= 3 else 0)
                off = (slot % 3) * SEG + 768 * h + 8 * beta
                e.lg("ds_read_b64_tr_b16 %s, v%d offset:%d" % (wreg(s * 6 + b, h), base, off), K(("tr", s)))
        if s + NBUF < 12:
            e.wlg(lambda env, t, s=s: t == ("tr", s))
            dma_wo(s + NBUF)
        if s == SIGAT:
            signal()
        if s in early:
            for op in job_ops(early[s]):
                op()
    e.wlg(lambda env, t: t[0] == "tr")
    e.stamp(K("wo_done"))

    def mkstep(s, ab, cinit, rd, wc=False):
        return dict(s=s, ab=ab, cinit=cinit, rd=rd, pre=[], fill=[], wc=wc)

    def emit_read(tf, i, rd):
        base, off = rd
        r = V_B + 4 * (i % NB)
        e.lg("ds_read_b128 v[%d:%d], v%d offset:%d" % (r, r + 3, base, off), lambda env, i=i: ("b", tf(env) + i))

    def emit_steps(tf, steps, nxt):
        rds = [st["rd"] for st in steps] + nxt
        for i, st in enumerate(steps):
            e.C("step %d (s=%d)" % (i, st["s"]))
            e.wlg(lambda env, t, i=i: t == ("b", tf(env) + i))
            for f in st["pre"]:
                f()
            fl = list(st["fill"])
            per = (len(fl) + 4) // 5
            br = V_B + 4 * (i % NB)
            s = st["s"]
            for b in range(6):
                f = s * 6 + b
                if st["wc"]:
                    e.wvm(lambda env, t, f=f: t == ("wc", f))
                a = st["ab"] + 4 * b
                if st["cinit"] is None:
                    cc = "v[%d:%d]" % (a, a + 3)
                elif st["cinit"] == 0:
                    cc = "0"
                else:
                    cc = "v[%d:%d]" % (V_QF + 4 * b, V_QF + 4 * b + 3)
                e.I("v_mfma_f32_16x16x32_bf16 v[%d:%d], %s, v[%d:%d], %s" % (a, a + 3, wreg(f), br, br + 3, cc))
                if b == 0:
                    emit_read(tf, i + D, rds[i + D])
                else:
                    for _ in range(per):
                        if fl:
                            fl.pop(0)()
            assert not fl

    def pack_list(ab, dst0):
        return [I_("v_cvt_pk_bf16_f32 v%d, v%d, v%d" % (dst0 + i, ab + 2 * i, ab + 2 * i + 1)) for i in range(12)]

    def unpack_ins(i, src0):
        src = src0 + (i >> 1)
        if i & 1:
            return "v_and_b32 v%d, 0xffff0000, v%d" % (V_QF + i, src)
        return "v_lshlrev_b32 v%d, 16, v%d" % (V_QF + i, src)

    def rd_p(t, s):
        lds, par = unit_lds(t)
        sg = (s & 3) ^ (2 * par)
        if lds < 4 * SEG:
            return (V_PB + sg, lds - 2 * SEG + (s >> 2) * 256)
        return (V_PB2 + sg, lds - 4 * SEG + (s >> 2) * 256)

    def rd_c(k, s):
        if k == 4:
            k = 0
        return (V_CB + (s & 3), (k >> 1) * SEG + (k & 1) * 768 + (s >> 2) * 256)

    steps = []
    for t in range(5):
        for s in range(12):
            steps.append(mkstep(s, accb(t & 1), 0 if s == 0 else None, rd_p(t, s)))
    PBSET = {5: V_Q + 60, 6: V_Q + 84, 7: accb(1), 8: V_QF}
    for s in range(12):
        for t in (5, 6, 7, 8):
            steps.append(mkstep(s, PBSET[t], 0 if s == 0 else None, rd_p(t, s)))
    G0 = len(steps)
    for s in range(12):
        steps.append(mkstep(s, accb(0), 0 if s == 0 else None, rd_c(0, s), wc=True))

    def spread(ops, i0, per_step):
        for k, op in enumerate(ops):
            steps[i0 + k // per_step if per_step >= 1 else 0]["fill"].append(op)

    def spread_every(ops, i0, stride):
        for k, op in enumerate(ops):
            steps[i0 + k * stride]["fill"].append(op)

    for t in range(5):
        spread(pack_list(accb(t & 1), V_Q + 12 * t), 12 * (t + 1) + 1, 4)

    def barrier(pred, name=None, extra=None):
        def f():
            if pred:
                e.wvm(pred)
            if extra:
                extra()
            e.I("s_barrier")
            if name:
                e.stamp(K(name))
        return f

    def poll_check():
        e.I("s_mov_b32 s%d, 0" % S_SPIN)
        e.L("L_spin")
        e.I("v_readfirstlane_b32 s%d, v%d" % (S_T0, V_POLL))
        e.I("s_cmp_eq_u32 s%d, %d" % (S_T0, NDONE))
        e.I("s_cbranch_scc1 L_spun")
        e.I("s_add_u32 s%d, s%d, 1" % (S_SPIN, S_SPIN))
        e.I("s_cmp_gt_u32 s%d, 0x4000" % S_SPIN)
        e.I("s_cbranch_scc1 L_spun")
        e.I("s_sleep 32")
        e.I("buffer_load_dword v%d, off, s[%d:%d], s%d sc1" % (V_POLL, S_DBG, S_DBG + 3, S_DONE))
        e.I("s_waitcnt vmcnt(0)")
        e.I("s_branch L_spin")
        e.L("L_spun")

    steps[12 + 8]["pre"].append(barrier(lambda env, t: t == ("p23",), "b1"))
    steps[36 + 8]["pre"].append(barrier(lambda env, t: t == ("p4",), "b2"))
    steps[48 + 8]["pre"].append(barrier(lambda env, t: t in (("p56",), ("p78",), ("poll",)), "b3", poll_check))
    steps[G0 - D - 1]["pre"].append(barrier(lambda env, t: t == ("c", 0), "b4"))
    steps[G0 + 1]["pre"].append(barrier(None, "g0"))
    steps[POLLAT]["fill"].append(lambda: e.vm("buffer_load_dword v%d, off, s[%d:%d], s%d sc1"
                                              % (V_POLL, S_DBG, S_DBG + 3, S_DONE), K(("poll",))))
    for name, i0, stride in JOBS:
        spread_every(job_ops(name, True), i0, stride)

    def load_wc(f):
        def op():
            if f % 4 == 0 or f % 6 == 0:
                e.I("s_mov_b32 s%d, %d" % (S_WOFF, 4096 * (f >> 2)))
            e.vm("buffer_load_dwordx4 %s, v%d, s[%d:%d], s%d offen offset:%d sc1"
                 % (wreg(f), V_WL, S_WS, S_WS + 3, S_WOFF, 1024 * (f & 3)), K(("wc", f)))
        return op
    for s in range(12):
        i0 = 60 + 4 * (s + 1)
        for b in range(6):
            steps[i0 + (b * 4) // 6 if s < 11 else i0]["fill"].append(load_wc(s * 6 + b))
    work = pack_list(PBSET[5], V_Q + 60) + pack_list(PBSET[6], V_Q + 72) + pack_list(PBSET[7], V_Q + 84) \
        + pack_list(PBSET[8], V_Q + 96) + [I_(unpack_ins(i, V_Q)) for i in range(24)]
    spread(work, G0 + 1, 7)

    e.wvm(lambda env, t: t == ("p01",))
    e.I("s_barrier")
    e.stamp(K("p_ready"))
    t0 = lambda env: 0
    for i in range(D):
        emit_read(t0, i, steps[i]["rd"])
    emit_steps(t0, steps, [rd_c(1, s) for s in range(D)])
    e.I("s_nop 3")
    for i in range(24):
        e.I("v_add_f32 v%d, v%d, v%d" % (accb(0) + i, accb(0) + i, V_QF + i))
    e.I("s_branch L_g1")

    def epi(pb, kprev, gf, soff):
        ab = accb(pb)
        cv = lambda j: [I_("v_cvt_pk_bf16_f32 v%d, v%d, v%d" % (ab + 8 * j + d, ab + 8 * j + 2 * d, ab + 8 * j + 2 * d + 1))
                        for d in range(4)]
        x0, x1, tt = ab, ab + 8, ab + 4
        cp = [I_("v_mov_b32 v%d, v%d" % (tt + d, x0 + d)) for d in range(4)]
        da = [I_("v_mov_b32_dpp v%d, v%d row_ror:8 row_mask:0xf bank_mask:0xc" % (x0 + d, x1 + d)) for d in range(4)]
        db = [I_("v_mov_b32_dpp v%d, v%d row_ror:8 row_mask:0xf bank_mask:0x3" % (x1 + d, tt + d)) for d in range(4)]
        xw = lambda: e.lg("ds_write_b128 v%d, v[%d:%d] offset:%d" % (V_XW, ab + 16, ab + 19, 4096 * kprev),
                          lambda env: ("xw", gf(env)))
        sa = lambda: e.vm("buffer_store_dwordx4 v[%d:%d], v%d, s[%d:%d], s%d offen offset:%d%s"
                          % (x0, x0 + 3, V_ST, S_OUT, S_OUT + 3, soff, 768 * (kprev & 1), STF), K(("st",)))
        sb = lambda: e.vm("buffer_store_dwordx4 v[%d:%d], v%d, s[%d:%d], s%d offen offset:%d%s"
                          % (x1, x1 + 3, V_ST2, S_OUT, S_OUT + 3, soff, 768 * (kprev & 1), STF), K(("st",)))
        return dict(cv=cv, cp=cp, da=da, db=db, xw=xw, sa=sa, sb=sb)

    def xrd(reg, kk, gf):
        return lambda: e.lg("ds_read_b128 v[%d:%d], v%d offset:%d" % (reg, reg + 3, V_XR, 4096 * kk),
                            lambda env: ("xr", gf(env)))

    def xst(reg, kk, gf, soff):
        def op():
            e.wlg(lambda env, t: t == ("xr", gf(env)))
            e.vm("buffer_store_dwordx4 v[%d:%d], v%d, s[%d:%d], s%d offen offset:%d%s"
                 % (reg, reg + 3, V_ST3, S_OUT, S_OUT + 3, soff, 768 * (kk & 1), STF), K(("st",)))
        return op

    SOFF = {3: S_UP1, 0: S_U0, 1: S_U0, 2: S_U0R}

    def multi(lst):
        def f():
            for ins in lst:
                e.I(ins)
        return f

    def loop_group(k):
        gam = lambda env: 4 * env["u"] + k
        buf = k & 1
        pb = buf ^ 1
        kprev = (k - 1) % 4
        st = [mkstep(s, accb(buf), 1 if s == 0 else None, rd_c(k, s)) for s in range(12)]
        F = lambda s, op: st[s]["fill"].append(op)
        ep = epi(pb, kprev, lambda env: gam(env) - 1, SOFF[kprev])
        for op in ep["cv"](2): F(1, op)
        if "xw" not in DROP: F(2, ep["xw"])
        for op in ep["cv"](0): F(2, op)
        for op in ep["cv"](1): F(3, op)
        if "dpp" not in DROP:
            for op in ep["cp"]: F(3, op)
            for op in ep["da"]: F(4, op)
            for op in ep["db"]: F(5, op)
        if "st" not in DROP:
            F(6, ep["sa"])
            F(7, ep["sb"])
        par = 1 if k in (1, 2) else 0
        q0 = 0 if (k & 1) else 3
        segf = {1: lambda env: 2 * env["u"] + 5, 2: lambda env: 2 * env["u"] + 5,
                3: lambda env: 2 * env["u"] + 6, 0: lambda env: 2 * env["u"] + 4}[k]
        dm = dma_cluster(V_CDMA, q0, S_C, S_JS0 + par, S_JL, par * SEG, lambda env: ("c", segf(env)), LDF)
        if "dma" not in DROP:
            for n in range(3):
                F(6 + n, dm[n])
        if k & 1:
            def bar():
                e.wvm(lambda env, t: t == ("c", (gam(env) + 1) // 2))
                e.wlg(lambda env, t: t == ("xw", gam(env) - 1))
                e.I("s_barrier")
                if k == 1:
                    e.stamp(lambda env: "u%d" % env["u"])
            st[5]["pre"].append(bar)
            r1, r2 = accb(pb) + 12, accb(pb) + 20
            k2, k1 = (k - 2) % 4, (k - 1) % 4
            if "xw" not in DROP:
                F(5, xrd(r1, k2, lambda env: gam(env) - 2))
                F(5, xrd(r2, k1, lambda env: gam(env) - 1))
            if "st" not in DROP:
                F(9, xst(r1, k2, lambda env: gam(env) - 2, SOFF[k2]))
                F(10, xst(r2, k1, lambda env: gam(env) - 1, SOFF[k1]))
        if k == 3:
            F(1, multi(["s_add_u32 s%d, s%d, 1" % (S_CX, S_CX),
                        "s_cmp_eq_u32 s%d, 12" % S_CX,
                        "s_cselect_b32 s%d, %d, 0" % (S_T0, 12 * SEG),
                        "s_cselect_b32 s%d, 0, s%d" % (S_CX, S_CX)]))
            F(2, multi(["s_add_u32 s%d, s%d, s%d" % (S_UL, S_UL, S_T0),
                        "s_add_u32 s%d, s%d, %d" % (S_UL, S_UL, SEG)]))
            F(3, multi(["s_mul_i32 s%d, s%d, %d" % (S_T1, S_PI, PAIR),
                        "s_add_u32 s%d, s%d, s%d" % (S_T1, S_T1, S_W6)]))
            F(4, multi(["s_cmp_lt_u32 s%d, 6" % S_CNT,
                        "s_cselect_b32 s%d, s%d, 0x%x" % (S_JS0, S_UL, OOB),
                        "s_cselect_b32 s%d, s%d, 0x%x" % (S_JL, S_T1, LDS_DUMMY)]))
            F(5, I_("s_add_u32 s%d, s%d, %d" % (S_JS1, S_JS0, ROW)))
            for n in range(4):
                F(11 - D, I_("v_add_u32 v%d, s%d, v%d" % (V_CB + n, S_DN, V_CB + n)))
            if "unp" not in DROP:
                for n in range(6):
                    blk = ["s_set_gpr_idx_on s%d, gpr_idx(SRC1)" % S_QI] + \
                          [unpack_ins(4 * n + r, V_Q) for r in range(4)] + ["s_set_gpr_idx_off"]
                    F((9, 9, 10, 10, 11, 11)[n], multi(blk))
            F(11, multi(["s_mov_b32 s%d, s%d" % (S_UP1, S_U0R),
                         "s_mov_b32 s%d, s%d" % (S_U0, S_U1)]))
            F(11, multi(["s_add_u32 s%d, s%d, %d" % (S_U0R, S_U1, ROW),
                         "s_add_u32 s%d, s%d, 1" % (S_CNT, S_CNT)]))
        if k == 0:
            F(8, multi(["s_mov_b32 s%d, s%d" % (S_U1, S_U2),
                        "s_mov_b32 s%d, s%d" % (S_U2, S_UL)]))
            F(9, multi(["s_add_u32 s%d, s%d, 1" % (S_PI, S_PI),
                        "s_cmp_eq_u32 s%d, 3" % S_PI,
                        "s_cselect_b32 s%d, 0, s%d" % (S_PI, S_PI)]))
            F(10, multi(["s_cmp_eq_u32 s%d, 2" % S_PI,
                         "s_cselect_b32 s%d, %d, 0" % (S_DN, -3 * PAIR),
                         "s_add_u32 s%d, s%d, %d" % (S_DN, S_DN, PAIR)]))
            F(11, I_("s_add_u32 s%d, s%d, 12" % (S_QI, S_QI)))
        emit_steps(lambda env: G0 + 12 * gam(env), st, [rd_c(k + 1, s) for s in range(D)])

    e.block("lg0", "loop")
    e.L("L_top")
    loop_group(0)
    e.block("lg123", "loop")
    e.L("L_g1")
    for k in (1, 2, 3):
        loop_group(k)
    e.I("s_cmp_lt_u32 s%d, %d" % (S_CNT, NU))
    e.I("s_cbranch_scc1 L_top")

    e.block("tail", "loop")
    e.stamp(K("tail"))
    ep = epi(1, 3, lambda env: 35, S_UP1)
    e.I("s_nop 7")
    for op in ep["cv"](2): op()
    ep["xw"]()
    for op in ep["cv"](0) + ep["cv"](1) + ep["cp"] + ep["da"] + ep["db"]:
        op()
    e.wlg(lambda env, t: t == ("xw", 35))
    e.I("s_barrier")
    xrd(accb(1) + 20, 3, lambda env: 35)()
    ep["sa"]()
    ep["sb"]()
    xst(accb(1) + 20, 3, lambda env: 35, S_UP1)()
    if STAMP:
        e.stamp(K("issued"))
        e.syncvm()
        e.synclg()
        e.stamp(K("end"))
        e.synclg()
        e.stamp(K("x"))
        e.I("v_mbcnt_lo_u32_b32 v21, -1, 0")
        e.I("v_mbcnt_hi_u32_b32 v21, -1, v21")
        e.I("v_lshlrev_b32 v21, 2, v21")
        e.I("s_lshl_b32 s%d, s2, 2" % S_T0)
        e.I("s_add_u32 s%d, s%d, s%d" % (S_T0, S_T0, S_W))
        e.I("s_lshl_b32 s%d, s%d, 8" % (S_T0, S_T0))
        e.I("s_add_u32 s%d, s%d, %d" % (S_T0, S_T0, 1 << 20))
        e.I("buffer_store_dword v%d, v21, s[%d:%d], s%d offen" % (V_STAMP, S_WS, S_WS + 3, S_T0))
    e.L("L_end")
    e.I("s_endpgm")

    def trace(prod):
        tr = []
        for nm in e.order:
            c = e.cond[nm]
            if c is None or (c == "prod" and prod) or (c == "nonprod" and not prod):
                tr.append((nm, {}))
        for u in range(NU):
            if u:
                tr.append(("lg0", {"u": u}))
            tr.append(("lg123", {"u": u}))
        tr.append(("tail", {}))
        return tr
    e.resolve([trace(False), trace(True)])
    if STAMP:
        names = ["entry"] + e.stamp_names(trace(False))[:-1]
        open("stamps.txt", "w").write(",".join(names))
    txt = e.text()
    check_m0(txt)
    return txt


def check_m0(txt):
    cur = None
    for ln in txt.splitlines():
        code = ln.split(";")[0]
        if " m0," in code or "s_set_gpr_idx" in code or code.strip().endswith(":"):
            cur = ln.split("m0id=")[1].strip() if "m0id=" in ln else None
        elif code.rstrip().endswith(" lds"):
            want = ln.split("m0id=")[1].strip()
            assert cur == want, "m0 clobbered before: " + ln


STAMPWO = opt("STAMPWO", 0)
WOPF = opt("WOPF", 1)
FIRST = eval(opt("FIRST", "['p01']"))
EARLY = eval(opt("EARLY", "[(11,'p23')]"))
JOBS = eval(opt("JOBS", "[('p4',0,1),('p56',6,2),('p78',18,2),('c0',30,2),('c1',44,2),('c2',110,1),('c3',113,1),('c4',114,1)]"))
POLLAT = opt("POLLAT", 42)
SIGAT = opt("SIGAT", 4)

HEADER = open("standalone__detection_seg_fpn_lateral__vision.s.ref").read().split("; Override")[0]


def kd(name, vgpr, accum, sgpr):
    return """.amdhsa_kernel %s
  .amdhsa_next_free_vgpr %d
  .amdhsa_next_free_sgpr %d
  .amdhsa_accum_offset %d
  .amdhsa_group_segment_fixed_size 0
  .amdhsa_kernarg_size 56
  .amdhsa_user_sgpr_count 2
  .amdhsa_user_sgpr_kernarg_segment_ptr 1
  .amdhsa_system_sgpr_workgroup_id_x 1
.end_amdhsa_kernel
""" % (name, vgpr, sgpr, accum)


def main():
    out = HEADER
    out += "; @launch grid=(256,1,1) block=(256,1,1) lds=163840\n"
    out += '.amdgcn_target "amdgcn-amd-amdhsa--gfx950"\n.text\n'
    out += ".globl %s\n.p2align 8\n.type %s,@function\n" % (KN, KN)
    out += gen()
    out += ".fill 4096, 4, 0xBF800000\n"
    out += '.section .rodata,"a"\n.p2align 6\n'
    out += kd(KN, 512, 256, 96)
    path = sys.argv[1] if len(sys.argv) > 1 else "standalone__detection_seg_fpn_lateral__vision.s"
    open(path, "w").write(out)


if __name__ == "__main__":
    main()
```

```python
import re

def regs(tok):
    tok = tok.strip()
    m = re.fullmatch(r"([vas])\[(\d+):(\d+)\]", tok)
    if m:
        return [(m.group(1), i) for i in range(int(m.group(2)), int(m.group(3)) + 1)]
    m = re.fullmatch(r"([vas])(\d+)", tok)
    if m:
        return [(m.group(1), int(m.group(2)))]
    if tok in ("m0", "vcc", "exec"):
        return [(tok, 0)]
    return []

def parse(line):
    code = line.split(";")[0].strip()
    if not code or code.endswith(":"):
        return None
    parts = code.split(None, 1)
    op = parts[0]
    ops = []
    if len(parts) > 1:
        ops = [t.strip() for t in parts[1].split(",")]
        last = ops[-1].split()
        ops[-1] = last[0]
        mods = last[1:]
    else:
        mods = []
    R = [regs(t) for t in ops]
    d = dict(op=op, text=code, w=[], r=[], kind="other", mods=mods)
    if op.startswith("v_mfma"):
        d.update(kind="mfma", w=R[0], a=R[1], b=R[2], c=R[3], r=R[1] + R[2] + R[3])
    elif op.startswith("v_readfirstlane") or op.startswith("v_readlane"):
        d.update(kind="valu", w=R[0], r=sum(R[1:], []), rfl=True)
    elif op.startswith("v_add_co") or op.startswith("v_addc_co"):
        d.update(kind="valu", w=R[0] + R[1], r=sum(R[2:], []))
    elif op.startswith("v_"):
        d.update(kind="valu", w=R[0], r=sum(R[1:], []), dpp=op.endswith("_dpp"))
        if op.endswith("_dpp") or op.startswith("v_writelane"):
            d["r2"] = R[0]
    elif op.startswith("ds_read"):
        d.update(kind="mem", w=R[0], r=sum(R[1:], []))
    elif op.startswith("ds_write"):
        d.update(kind="mem", r=sum(R, []))
    elif op.startswith("buffer_load") or op.startswith("global_load"):
        if "lds" in mods:
            d.update(kind="mem", r=sum(R, []) + [("m0", 0)], dma=True, vmem=True)
        else:
            d.update(kind="mem", w=R[0], r=sum(R[1:], []), vmem=True)
    elif op.startswith("buffer_store") or op.startswith("buffer_atomic"):
        d.update(kind="mem", r=sum(R, []), vmem=True)
        if op.endswith("x4") or op.endswith("x3"):
            d["wide"] = R[0]
    elif op.startswith("s_"):
        d.update(kind="salu")
        if op not in ("s_nop", "s_waitcnt", "s_barrier", "s_branch", "s_sleep", "s_endpgm") and not op.startswith("s_cmp") \
                and not op.startswith("s_cbranch") and not op.startswith("s_set_gpr"):
            d.update(w=R[0], r=sum(R[1:], []))
    d["states"] = int(ops[0]) + 1 if op == "s_nop" else 1
    return d

def check(lines):
    ins = [p for p in (parse(l) for l in lines) if p]
    errs = set()
    for i, cur in enumerate(ins):
        dist = 0
        for j in range(i - 1, max(-1, i - 12), -1):
            prev = ins[j]
            def need(n, why):
                if dist < n:
                    errs.add("%s (have %d need %d): [%s] -> [%s]" % (why, dist, n, prev["text"], cur["text"]))
            pw, pr = set(prev["w"]), set(prev["r"])
            cw, cr = set(cur["w"]), set(cur["r"]) | set(cur.get("r2", []))
            if prev["kind"] == "mfma":
                if cur["kind"] == "mfma":
                    if pw & (set(cur["a"]) | set(cur["b"])):
                        need(8, "mfma D->A/B")
                    if pw & set(cur["c"]) and list(prev["w"]) != list(cur["c"]):
                        need(6, "mfma D->C overlap")
                elif cur["kind"] in ("valu", "mem"):
                    if pw & (cw | cr):
                        need(8, "mfma D->valu/mem")
                    if cur["kind"] == "valu" and set(prev["c"]) & cw:
                        need(3, "mfma C WAR")
            if prev["kind"] == "valu":
                vw = {x for x in pw if x[0] in "va"}
                sw = {x for x in pw if x[0] in ("s", "vcc")}
                if cur["kind"] == "mfma" and vw & cr:
                    need(2, "valu->mfma")
                if cur.get("dpp") and vw & set(cur["r"]):
                    need(2, "valu->dpp")
                if cur.get("rfl") and vw & cr:
                    need(1, "valu->readlane")
                if cur.get("vmem") and sw & cr:
                    need(5, "valu sgpr->vmem")
                if cur["kind"] == "valu" and {x for x in sw if x[0] == "s"} & cr:
                    need(2, "valu sgpr->valu")
            if prev.get("wide") and cur["kind"] in ("valu", "mfma") and set(prev["wide"]) & cw:
                need(2, "store data WAR")
            if prev["kind"] == "salu" and ("m0", 0) in pw and cur.get("dma"):
                need(1, "m0->dma")
            dist += prev["states"]
            if dist >= 10:
                break
    return sorted(errs)
```

```python
import sys, os
sys.path.insert(0, "code")

def opt(name, default):
    v = os.environ.get(name)
    if v is None:
        return default
    return type(default)(v)

STAMP = opt("STAMP", 0)
CLK = "s_memtime" if STAMP == 2 else "s_memrealtime"
LDF = opt("LDF", "nt")
STF = opt("STF", "sc1")
CODEPF = opt("CODEPF", 1)
NBUF = opt("NBUF", 3)
DROP = opt("DROP", "").split(",")
if LDF: LDF = " " + LDF
if STF: STF = " " + STF

KN = "standalone__detection_seg_fpn_lateral__vision_kernel"
C_BYTES = 113246208
P_BYTES = 28311552
W_BYTES = 294912
SEG = 24576
BLK = 12288
ROW = 294912
PAIR = 2 * SEG
NWG = 256
NU = 9
PBASE = 2 * SEG
OOB = 0x80000000
LDS_DUMMY = 0x30000
INTER = opt("INTER", 2)
STAMPG = opt("STAMPG", 0)
NITEM = 72
NDONE = 72

class Prog:
    def __init__(self):
        self.blocks = {}
        self.order = []
        self.cond = {}
        self.cur = None
        self.nw = 0

    def block(self, name, cond=None):
        self.cur = []
        assert name not in self.blocks
        self.blocks[name] = self.cur
        self.order.append(name)
        self.cond[name] = cond

    def I(self, s):
        self.cur.append(("i", s))

    def L(self, s):
        self.cur.append(("l", s))

    def C(self, s):
        self.cur.append(("c", s))

    def vm(self, s, tagf):
        self.cur.append(("vm", s, tagf))

    def lg(self, s, tagf):
        self.cur.append(("lg", s, tagf))

    def wvm(self, predf):
        self.cur.append(("wvm", predf, self.nw)); self.nw += 1

    def wlg(self, predf):
        self.cur.append(("wlg", predf, self.nw)); self.nw += 1

    def kwvm(self, predf):
        self.cur.append(("kw", predf, self.nw)); self.nw += 1

    def mwvm(self, predf):
        self.cur.append(("mw", predf, self.nw)); self.nw += 1

    def syncvm(self):
        self.cur.append(("fvm",))

    def synclg(self):
        self.cur.append(("flg",))

    def stamp(self, namef, fine=False):
        if STAMPG and not fine and namef({"u": 0}) not in ("tail", "issued", "end", "x"):
            return
        if fine and not STAMPG:
            return
        if STAMP:
            self.cur.append(("st", namef))

    def resolve(self, traces):
        INF = 10 ** 9
        need = {}
        cap = {"wvm": 63, "wlg": 15}
        for trace in traces:
            done = {"vm": 0, "lg": 0}
            q = {"vm": [], "lg": []}
            for name, env in trace:
                for it in self.blocks[name]:
                    k = it[0]
                    if k in ("vm", "lg"):
                        q[k].append(it[2](env))
                    elif k == "fvm":
                        done["vm"] = len(q["vm"])
                    elif k == "flg":
                        done["lg"] = len(q["lg"])
                    elif k in ("wvm", "wlg", "kw", "mw"):
                        c = "vm" if k in ("kw", "mw") else k[1:]
                        key = (it[2], env["kind"]) if k == "kw" else ((it[2], int(env["u"] >= 8)) if k == "mw" else it[2])
                        lst = q[c]
                        idx = -1
                        for i in range(len(lst) - 1, done[c] - 1, -1):
                            if it[1](env, lst[i]):
                                idx = i
                                break
                        if idx >= 0:
                            need[key] = min(need.get(key, INF), len(lst) - 1 - idx)
                            done[c] = max(done[c], idx + 1)
        self.need = need
        self.useful = set(need)
        self.cap = cap

    def stamp_names(self, trace):
        names = []
        for name, env in trace:
            for it in self.blocks[name]:
                if it[0] == "st":
                    names.append(it[1](env))
        return names

    def text(self, order=None):
        out = []
        for name in (order or self.order):
            out.append("    ; ---- block %s" % name)
            for it in self.blocks[name]:
                k = it[0]
                if k in ("i", "vm", "lg"):
                    out.append("    " + it[1])
                elif k == "l":
                    out.append(it[1] + ":")
                elif k == "c":
                    out.append("    ; " + it[1])
                elif k == "fvm":
                    out.append("    s_waitcnt vmcnt(0)")
                elif k == "flg":
                    out.append("    s_waitcnt lgkmcnt(0)")
                elif k in ("wvm", "wlg"):
                    if it[2] in self.useful:
                        n = min(self.need[it[2]], self.cap[k])
                        out.append("    s_waitcnt %s(%d)" % ("vmcnt" if k == "wvm" else "lgkmcnt", n))
                elif k == "kw":
                    ns = {kd_: min(self.need[(it[2], kd_)], 63) for kd_ in range(3) if (it[2], kd_) in self.need}
                    if len(ns) == 3 and len(set(ns.values())) == 1:
                        out.append("    s_waitcnt vmcnt(%d)" % ns[0])
                    else:
                        for kd_, n in ns.items():
                            out.append("    s_cmp_lg_u32 s%d, %d" % (S_KIND, kd_))
                            out.append("    s_cbranch_scc1 L_kw%d_%d" % (it[2], kd_))
                            out.append("    s_waitcnt vmcnt(%d)" % n)
                            out.append("L_kw%d_%d:" % (it[2], kd_))
                elif k == "mw":
                    n0 = min(self.need.get((it[2], 0), 63), 63)
                    n1 = min(self.need.get((it[2], 1), 63), 63)
                    if n0 <= n1:
                        out.append("    s_waitcnt vmcnt(%d)" % n0)
                    else:
                        out.append("    s_cmp_lt_u32 s%d, 8" % S_CNT)
                        out.append("    s_waitcnt vmcnt(%d)" % n0)
                        out.append("    s_cbranch_scc1 L_mw%d" % it[2])
                        out.append("    s_waitcnt vmcnt(%d)" % n1)
                        out.append("L_mw%d:" % it[2])
                elif k == "st":
                    out.append("    s_mov_b32 m0, s%d" % S_STC)
                    out.append("    s_add_u32 s%d, s%d, 1" % (S_STC, S_STC))
                    out.append("    v_writelane_b32 v%d, s%d, m0" % (V_STAMP, S_STV))
                    out.append("    %s s[%d:%d]" % (CLK, S_STV, S_STV + 1))
        return "\n".join(out) + "\n"


V_CDMA = 0
V_CB = 6
V_XW = 10
V_XR = 11
V_ST = 12
V_ST2 = 13
V_ST3 = 14
V_WL = 15
NB = 4
D = 3
V_B = 16
V_PB = 32
V_ACC = 36
V_QF = 84
V_Q = 108
V_PB2 = 216
V_POLL = 220
V_ONE = 221
V_PO = 222
V_STAMP = 223
V_W = 224
T_LANE, T_W, T_P, T_G = 84, 85, 86, 87
T_A, T_B2, T_C = 88, 89, 90
T_ODMA = 108
T_TR = 92
T_WLA = 114
T_PA = 98
T_PF = 116
PD = 16
PR = 120

S_W = 3
S_C, S_P, S_WS, S_OUT, S_WO, S_WL, S_DBG = 8, 12, 16, 20, 24, 28, 32
S_W6 = 36
S_PSRC = 37
S_T0, S_T1, S_T2 = 38, 39, 40
S_SEGQ = 41
S_UP1, S_U0, S_U0R, S_U1, S_U2, S_UL = 47, 48, 49, 50, 51, 52
S_CX = 53
S_JS0, S_JS1, S_JL = 54, 55, 56
S_DN = 57
S_PI = 58
S_QI = 59
S_CNT = 60
S_WOFF = 61
S_DONE = 62
S_SPIN = 63
S_STC = 64
S_STV = 66
S_EX = 68
S_PJ = 70
S_PJL = 71
S_PW = 86
S_PO = 87
S_ITEM = 88
S_KIND = 89
S_JP, S_JLIM, S_JTH = 90, 91, 92
S_G = 72
S_GS, S_GL = 76, 77
S_RANK = 93
S_NS, S_NL = 94, 95
S_WID = 65
USTR = {0: 1, 4: 32}.get(INTER, 256)
STRIPE = 0
XB = 6 * SEG


def wreg(f, h=None):
    if f < 64:
        p, r = "a", 4 * f
    else:
        p, r = "v", V_W + 4 * (f - 64)
    if h is None:
        return "%s[%d:%d]" % (p, r, r + 3)
    return "%s[%d:%d]" % (p, r + 2 * h, r + 2 * h + 1)


def accb(buf):
    return V_ACC + 24 * buf


def srd(e, d, lo, hi, nbytes):
    e.I("s_mov_b32 s%d, s%d" % (d, lo))
    e.I("s_mov_b32 s%d, s%d" % (d + 1, hi))
    e.I("s_mov_b32 s%d, %d" % (d + 2, nbytes))
    e.I("s_mov_b32 s%d, 0x00020000" % (d + 3))


PJOB = {"p01": (0, 2 * SEG), "p23": (2, 3 * SEG), "p4": (4, 6 * SEG), "p56": (5, 4 * SEG), "p78": (7, 5 * SEG)}


def unit_lds(t):
    if t <= 3:
        return 2 * SEG + t * BLK, t & 1
    if t == 4:
        return 6 * SEG, 0
    return 4 * SEG + (t - 5) * BLK, (t - 5) & 1


def gen():
    e = Prog()
    K = lambda t: (lambda env: t)
    uid = [0]

    def I_(s):
        return lambda: e.I(s)

    def cond_begin(cond):
        uid[0] += 1
        n = uid[0]
        if cond in ("F", "S"):
            e.I("s_cbranch_%s L_skip%d" % ("vccnz" if cond == "F" else "vccz", n))
        elif cond == "Sn":
            e.I("s_cmp_lg_u32 s%d, 1" % S_KIND)
            e.I("s_cbranch_scc1 L_skip%d" % n)
        else:
            e.I("s_cmp_%s_u32 s%d, %d" % ("ge" if cond == "prod" else "lt", S_ITEM, NITEM))
            e.I("s_cbranch_scc1 L_skip%d" % n)
        e.block("c%d" % n, cond)
        return n

    def cond_end(n):
        e.block("s%d" % n)
        e.L("L_skip%d" % n)

    e.block("start")
    e.L(KN)
    e.I("s_cmp_ge_u32 s2, %d" % NWG)
    e.I("s_cbranch_scc1 L_end")
    if STAMP:
        e.I("s_mov_b32 s%d, 0" % S_STC)
        e.I("v_mov_b32 v%d, 0" % V_STAMP)
        e.I("%s s[%d:%d]" % (CLK, S_STV, S_STV + 1))
    e.I("s_load_dwordx8 s[72:79], s[0:1], 0")
    e.I("s_load_dwordx4 s[80:83], s[0:1], 32")
    e.I("s_load_dwordx2 s[84:85], s[0:1], 48")
    e.I("v_and_b32 v%d, 63, v0" % T_LANE)
    e.I("v_lshrrev_b32 v%d, 6, v0" % T_W)
    e.I("v_and_b32 v%d, 15, v0" % T_P)
    e.I("v_bfe_u32 v%d, v0, 4, 2" % T_G)
    e.I("v_readfirstlane_b32 s%d, v%d" % (S_W, T_W))
    BUFSLOT = [5, 0, 1][:NBUF]

    def dma_cluster(vbase, q0, srdr, soff, ldsbase_s, ldsimm, tagf, flags, setup=None, each=False):
        ops = []
        uid[0] += 1
        mid = uid[0]
        for k in range(3):
            def op(k=k):
                if k == 0 or each:
                    if setup:
                        setup()
                    e.I("s_add_u32 m0, s%d, %d ; m0id=%d" % (ldsbase_s, ldsimm + 1024 * q0, mid))
                    e.I("s_nop 0")
                e.vm("buffer_load_dwordx4 v%d, s[%d:%d], s%d offen offset:%d%s lds ; m0id=%d"
                     % (vbase + q0 + k, srdr, srdr + 3, soff, 1024 * k, flags, mid), tagf)
            ops.append(op)
        return ops

    def dma_wo(s):
        e.I("s_mov_b32 s%d, %d" % (S_T0, s * SEG))
        for q0 in (0, 3):
            for op in dma_cluster(T_ODMA, q0, S_WO, S_T0, S_W6, BUFSLOT[s % NBUF] * SEG, K(("wo", s)), ""):
                op()

    def job_ops(name, each=False):
        ops = []
        for q0 in (0, 3):
            if name[0] == "p":
                u0, lds = PJOB[name]

                def setup(u0=u0, lds=lds):
                    e.I("s_add_u32 s%d, s%d, %d" % (S_PJ, S_PSRC, u0 * BLK * USTR))
                    if name == "p4":
                        e.I("s_cmp_lt_u32 s%d, 2" % S_W)
                        e.I("s_cselect_b32 s%d, s%d, 0x%x" % (S_PJ, S_PJ, OOB))
                        e.I("s_cselect_b32 s%d, s%d, 0x%x" % (S_PJL, S_W6, LDS_DUMMY - lds))
                ops += dma_cluster(V_CDMA, q0, S_P, S_PJ, S_PJL if name == "p4" else S_W6, lds, K((name,)), LDF, setup, each)
            else:
                n = int(name[1:])
                ops += dma_cluster(V_CDMA, q0, S_C, S_SEGQ + n, S_W6, n * SEG, K(("c", n)), LDF, None, each)
        return ops

    e.I("s_bfe_u32 s%d, s2, 0x50003" % S_T2)
    e.I("s_lshr_b32 s%d, s2, 1" % S_ITEM)
    e.I("s_and_b32 s%d, s2, 1" % S_T1)
    if PRODPAR:
        e.I("s_xor_b32 s%d, s%d, 1" % (S_T1, S_T1))
    e.I("s_lshl_b32 s%d, s%d, 7" % (S_T1, S_T1))
    e.I("s_add_u32 s%d, s%d, s%d" % (S_ITEM, S_ITEM, S_T1))
    if CODEPF:
        e.I("s_getpc_b64 s[%d:%d]" % (S_EX, S_EX + 1))
        e.I("s_lshl_b32 s%d, s%d, 8" % (S_T0, S_T2))
        e.I("v_add_u32 v%d, s%d, v0" % (T_PF, S_T0))
        e.I("v_and_b32 v%d, 0x7ff, v%d" % (T_PF, T_PF))
        e.I("v_lshlrev_b32 v%d, 4, v%d" % (T_PF, T_PF))
        e.I("v_mov_b32 v%d, s%d" % (T_PF + 1, S_EX + 1))
        e.I("v_add_co_u32 v%d, vcc, s%d, v%d" % (T_PF, S_EX, T_PF))
        e.I("v_addc_co_u32 v%d, vcc, 0, v%d, vcc" % (T_PF + 1, T_PF + 1))
        e.vm("global_load_dwordx4 v[28:31], v[%d:%d], off" % (T_PF, T_PF + 1), K(("pf",)))
    e.I("v_lshlrev_b32 v%d, 4, v0" % T_WLA)
    e.I("s_cmp_lt_u32 s%d, 128" % S_ITEM)
    e.I("s_cselect_b64 vcc, -1, 0")
    e.I("s_cselect_b32 s%d, 1, 0" % S_KIND)
    e.I("s_cmp_lt_u32 s%d, %d" % (S_ITEM, NITEM))
    e.I("s_cselect_b32 s%d, 2, s%d" % (S_KIND, S_KIND))
    e.I("s_mul_i32 s%d, s%d, 6144" % (S_W6, S_W))
    e.I("s_mov_b32 s%d, s%d" % (S_RANK, S_T2))
    if INTER == 2:
        e.I("s_and_b32 s%d, s2, 7" % S_WID)
        e.I("s_lshl_b32 s%d, s%d, 5" % (S_WID, S_WID))
        e.I("s_add_u32 s%d, s%d, s%d" % (S_WID, S_WID, S_T2))
    elif INTER == 4:
        e.I("s_and_b32 s%d, s2, 7" % S_WID)
        e.I("s_mul_i32 s%d, s%d, 288" % (S_WID, S_WID))
        e.I("s_add_u32 s%d, s%d, s%d" % (S_WID, S_WID, S_T2))
    elif INTER == 3:
        e.I("s_bfe_u32 s%d, s2, 0x20001" % S_WID)
        e.I("s_lshl_b32 s%d, s%d, 5" % (S_WID, S_WID))
        e.I("s_add_u32 s%d, s%d, s%d" % (S_WID, S_WID, S_T2))
        e.I("s_lshl_b32 s%d, s%d, 1" % (S_WID, S_WID))
        e.I("s_and_b32 s%d, s2, 1" % S_T0)
        e.I("s_add_u32 s%d, s%d, s%d" % (S_WID, S_WID, S_T0))
    else:
        e.I("s_mov_b32 s%d, s2" % S_WID)
    if INTER:
        e.I("s_lshr_b32 s%d, s%d, 1" % (S_T0, S_W))
        e.I("s_mul_i32 s%d, s%d, %d" % (S_T0, S_T0, USTR - 1))
        e.I("s_add_u32 s%d, s%d, s%d" % (S_T0, S_T0, S_WID))
        e.I("s_mul_i32 s%d, s%d, %d" % (S_PSRC, S_T0, BLK))
    else:
        e.I("s_mul_i32 s%d, s2, %d" % (S_PSRC, NU * BLK))
    e.I("v_mul_u32_u24 v%d, 384, v%d" % (T_C, T_W))
    e.I("v_add_u32 v%d, v%d, v%d" % (T_C, T_C, T_LANE))
    for q in range(6):
        e.I("v_add_u32 v%d, %d, v%d" % (T_A, 64 * q, T_C))
        e.I("v_mul_u32_u24 v%d, 683, v%d" % (T_B2, T_A))
        e.I("v_lshrrev_b32 v%d, 16, v%d" % (T_B2, T_B2))
        e.I("v_xor_b32 v%d, v%d, v%d" % (T_B2, T_A, T_B2))
        e.I("v_lshlrev_b32 v%d, 4, v%d" % (T_B2, T_B2))
        e.I("v_subrev_u32 v%d, %d, v%d" % (V_CDMA + q, 1024 * (q % 3), T_B2))
    e.stamp(K("pre_ka"))
    e.synclg()
    e.stamp(K("karg"))
    srd(e, S_WO, 78, 79, W_BYTES)
    srd(e, S_P, 74, 75, P_BYTES)
    n = cond_begin("F")
    e.I("s_mul_i32 s%d, s%d, %d" % (S_T2, S_T2, BLK))
    for i in range(3):
        e.vm("buffer_load_dwordx4 v[28:31], v%d, s[%d:%d], s%d offen" % (T_WLA, S_WO, S_WO + 3, S_T2), K(("pf",)))
        if i < 2:
            e.I("s_add_u32 s%d, s%d, 4096" % (S_T2, S_T2))
    cond_end(n)
    n = cond_begin("prod")
    srd(e, S_WL, 76, 77, W_BYTES)
    e.I("s_lshr_b32 s%d, s%d, 2" % (S_T1, S_ITEM))
    e.I("s_mul_i32 s%d, s%d, 10923" % (S_T0, S_T1))
    e.I("s_lshr_b32 s%d, s%d, 16" % (S_T0, S_T0))
    e.I("s_mul_i32 s%d, s%d, 6" % (S_T2, S_T0))
    e.I("s_sub_u32 s%d, s%d, s%d" % (S_T1, S_T1, S_T2))
    e.I("s_and_b32 s%d, s%d, 3" % (S_T2, S_ITEM))
    e.I("s_mul_i32 s%d, s%d, 3" % (S_T2, S_T2))
    e.I("s_add_u32 s%d, s%d, s%d" % (S_T0, S_T0, S_T2))
    e.I("v_lshrrev_b32 v%d, 3, v%d" % (T_A, T_LANE))
    e.I("v_mul_u32_u24 v%d, 768, v%d" % (T_A, T_A))
    e.I("v_and_b32 v%d, 7, v%d" % (T_B2, T_LANE))
    e.I("v_lshl_add_u32 v%d, v%d, 4, v%d" % (T_A, T_B2, T_A))
    e.I("s_lshl_b32 s%d, s%d, 7" % (S_PJ, S_T1))
    e.I("s_mul_i32 s%d, s%d, %d" % (S_T2, S_W, 6 * BLK))
    e.I("s_add_u32 s%d, s%d, s%d" % (S_PJ, S_PJ, S_T2))
    e.I("s_lshl_b32 s%d, s%d, 1" % (S_PJL, S_W6))
    for i in range(12):
        uid[0] += 1
        e.I("s_add_u32 m0, s%d, %d ; m0id=%d" % (S_PJL, STRIPE + 1024 * i, uid[0]))
        e.I("s_nop 0")
        e.vm("buffer_load_dwordx4 v%d, s[%d:%d], s%d offen lds ; m0id=%d" % (T_A, S_WO, S_WO + 3, S_PJ, uid[0]), K(("wl",)))
        if i < 11:
            e.I("s_add_u32 s%d, s%d, %d" % (S_PJ, S_PJ, 6144))
    e.I("s_lshl_b32 s%d, s%d, 1" % (S_T1, S_T1))
    e.I("s_lshr_b32 s%d, s%d, 1" % (S_T2, S_W))
    e.I("s_add_u32 s%d, s%d, s%d" % (S_T1, S_T1, S_T2))
    e.I("s_mul_i32 s%d, s%d, 21846" % (S_PW, S_T1))
    e.I("s_lshr_b32 s%d, s%d, 16" % (S_PW, S_PW))
    e.I("s_mul_i32 s%d, s%d, 3" % (S_T2, S_PW))
    e.I("s_sub_u32 s%d, s%d, s%d" % (S_T1, S_T1, S_T2))
    e.I("s_and_b32 s%d, s%d, 1" % (S_T2, S_PW))
    e.I("s_sub_u32 s%d, s%d, s%d" % (S_T1, S_T1, S_T2))
    e.I("s_cmp_eq_u32 s%d, -1" % S_T1)
    e.I("s_cselect_b32 s%d, 2, s%d" % (S_T1, S_T1))
    e.I("s_mul_i32 s%d, s%d, 72" % (S_PO, S_PW))
    e.I("s_mul_i32 s%d, s%d, 6" % (S_T2, S_T0))
    e.I("s_add_u32 s%d, s%d, s%d" % (S_PO, S_PO, S_T2))
    e.I("s_lshl_b32 s%d, s%d, 1" % (S_T2, S_T1))
    e.I("s_add_u32 s%d, s%d, s%d" % (S_PO, S_PO, S_T2))
    e.I("s_and_b32 s%d, s%d, 1" % (S_T2, S_W))
    e.I("s_add_u32 s%d, s%d, s%d" % (S_PO, S_PO, S_T2))
    e.I("s_lshl_b32 s%d, s%d, 10" % (S_PO, S_PO))
    e.I("s_mul_i32 s%d, s%d, %d" % (S_T0, S_T0, SEG))
    for q0 in (0, 3):
        for op in dma_cluster(V_CDMA, q0, S_WL, S_T0, S_W6, 4 * SEG, K(("wl",)), ""):
            op()
    cond_end(n)
    n = cond_begin("nonprod")
    for op in job_ops("p01"):
        op()
    cond_end(n)
    e.stamp(K("first"))
    if COOP:
        e.I("v_mul_u32_u24 v%d, 384, v%d" % (T_C, T_W))
        e.I("v_add_u32 v%d, v%d, v%d" % (T_C, T_C, T_LANE))
        for q in range(6):
            e.I("v_add_u32 v%d, %d, v%d" % (T_A, 64 * q, T_C))
            e.I("v_mul_u32_u24 v%d, 2731, v%d" % (T_B2, T_A))
            e.I("v_bfe_u32 v%d, v%d, 17, 2" % (T_B2, T_B2))
            e.I("v_lshlrev_b32 v%d, 2, v%d" % (T_B2, T_B2))
            e.I("v_xor_b32 v%d, v%d, v%d" % (T_B2, T_A, T_B2))
            e.I("v_lshlrev_b32 v%d, 4, v%d" % (T_B2, T_B2))
            e.I("v_subrev_u32 v%d, %d, v%d" % (T_ODMA + q, 1024 * (q % 3), T_B2))
        e.I("v_mul_u32_u24 v%d, 192, v%d" % (T_C, T_W))
    else:
        e.I("v_mul_u32_u24 v%d, 192, v%d" % (T_C, T_W))
        for q in range(6):
            e.I("v_add_u32 v%d, %d, v%d" % (T_A, 64 * q, T_LANE))
            e.I("v_mul_u32_u24 v%d, 5462, v%d" % (T_B2, T_A))
            e.I("v_lshrrev_b32 v%d, 16, v%d" % (T_B2, T_B2))
            e.I("v_lshlrev_b32 v%d, 4, v%d" % (T_A, T_A))
            e.I("v_mul_u32_u24 v%d, 576, v%d" % (T_B2, T_B2))
            e.I("v_add3_u32 v%d, v%d, v%d, v%d" % (T_A, T_A, T_B2, T_C))
            e.I("v_subrev_u32 v%d, %d, v%d" % (T_ODMA + q, 1024 * (q % 3), T_A))
    srd(e, S_C, 72, 73, C_BYTES)
    srd(e, S_OUT, 80, 81, C_BYTES)
    srd(e, S_DBG, 82, 83, 256)
    srd(e, S_WS, 84, 85, (8 << 20) if STAMP else W_BYTES)
    srd(e, S_G, S_P, S_P + 1, P_BYTES)

    e.I("s_and_b32 s%d, s%d, 1" % (S_T0, S_W))
    e.I("s_lshl_b32 s%d, s%d, 6" % (S_T1, S_T0))
    if COOP:
        e.I("v_lshrrev_b32 v%d, 2, v%d" % (T_TR + 3, T_P))
        e.I("v_lshl_add_u32 v%d, v%d, 3, v%d" % (T_A, T_G, T_TR + 3))
        e.I("v_mul_u32_u24 v%d, 768, v%d" % (T_A, T_A))
        e.I("v_and_b32 v%d, 3, v%d" % (T_B2, T_P))
        e.I("v_lshl_add_u32 v%d, v%d, 4, v%d" % (T_A, T_B2, T_A))
        e.I("s_mul_i32 s%d, s%d, 3" % (S_T2, S_W))
        e.I("s_add_u32 s%d, s%d, s%d" % (S_PJ, S_T2, S_T0))
        e.I("v_xor_b32 v%d, s%d, v%d" % (T_B2, S_PJ, T_TR + 3))
        e.I("v_lshl_add_u32 v%d, v%d, 6, v%d" % (T_TR, T_B2, T_A))
        e.I("s_add_u32 s%d, s%d, 1" % (S_PJ, S_PJ))
        e.I("v_xor_b32 v%d, s%d, v%d" % (T_B2, S_PJ, T_TR + 3))
        e.I("v_lshl_add_u32 v%d, v%d, 6, v%d" % (T_TR + 1, T_B2, T_A))
        e.I("s_xor_b32 s%d, s%d, 1" % (S_PJ, S_T0))
        e.I("s_lshl_b32 s%d, s%d, 1" % (S_PJ, S_PJ))
        e.I("s_add_u32 s%d, s%d, s%d" % (S_PJ, S_PJ, S_T2))
        e.I("v_xor_b32 v%d, s%d, v%d" % (T_B2, S_PJ, T_TR + 3))
        e.I("v_lshl_add_u32 v%d, v%d, 6, v%d" % (T_TR + 2, T_B2, T_A))
    else:
        e.I("v_lshrrev_b32 v%d, 2, v%d" % (T_A, T_P))
        e.I("v_lshl_add_u32 v%d, v%d, 3, v%d" % (T_A, T_G, T_A))
        e.I("v_mul_u32_u24 v%d, 192, v%d" % (T_A, T_A))
        e.I("v_and_b32 v%d, 3, v%d" % (T_B2, T_P))
        e.I("v_lshl_add_u32 v%d, v%d, 4, v%d" % (T_A, T_B2, T_A))
        e.I("v_add_u32 v%d, s%d, v%d" % (T_A, S_W6, T_A))
        e.I("s_and_b32 s%d, s%d, 1" % (S_T0, S_W))
        e.I("s_lshl_b32 s%d, s%d, 6" % (S_T1, S_T0))
        e.I("v_add_u32 v%d, s%d, v%d" % (T_TR, S_T1, T_A))
        e.I("v_add_u32 v%d, 64, v%d" % (T_TR + 1, T_TR))
        e.I("s_xor_b32 s%d, s%d, 1" % (S_T2, S_T0))
        e.I("s_lshl_b32 s%d, s%d, 7" % (S_T2, S_T2))
        e.I("v_add_u32 v%d, s%d, v%d" % (T_TR + 2, S_T2, T_A))
    for j in range(3):
        e.I("v_add_u32 v%d, %d, v%d" % (T_TR + 3 + j, 3 * SEG, T_TR + j))
    e.I("v_and_b32 v%d, 7, v%d" % (T_A, T_P))
    e.I("v_mul_u32_u24 v%d, 1536, v%d" % (T_A, T_A))
    e.I("v_lshrrev_b32 v%d, 3, v%d" % (T_B2, T_P))
    e.I("v_lshl_add_u32 v%d, v%d, 6, v%d" % (T_A, T_B2, T_A))
    e.I("v_lshl_add_u32 v%d, v%d, 4, v%d" % (T_A, T_G, T_A))
    e.I("v_add3_u32 v%d, v%d, v%d, s%d" % (V_ST, T_A, T_C, S_T1))
    e.I("v_add_u32 v%d, %d, v%d" % (V_ST2, 8 * 1536, V_ST))
    e.I("s_lshl_b32 s%d, s%d, 2" % (S_T2, S_T0))
    e.I("v_add_u32 v%d, s%d, v%d" % (T_A, S_T2, T_G))
    e.I("v_and_b32 v%d, 7, v%d" % (T_B2, T_P))
    e.I("v_xor_b32 v%d, v%d, v%d" % (T_A, T_A, T_B2))
    e.I("v_lshlrev_b32 v%d, 4, v%d" % (T_A, T_A))
    e.I("v_lshl_add_u32 v%d, v%d, 7, v%d" % (T_A, T_P, T_A))
    e.I("s_lshr_b32 s%d, s%d, 1" % (S_T1, S_W))
    e.I("s_lshl_b32 s%d, s%d, 11" % (S_T2, S_T1))
    e.I("s_add_u32 s%d, s%d, %d" % (S_T2, S_T2, XB))
    e.I("v_add_u32 v%d, s%d, v%d" % (V_XW, S_T2, T_A))
    e.I("v_lshrrev_b32 v%d, 3, v%d" % (T_A, T_LANE))
    e.I("v_and_b32 v%d, 7, v%d" % (T_B2, T_LANE))
    e.I("v_xor_b32 v%d, v%d, v%d" % (T_C, T_A, T_B2))
    e.I("v_lshlrev_b32 v%d, 4, v%d" % (T_C, T_C))
    e.I("s_lshl_b32 s%d, s%d, 3" % (S_T0, S_T0))
    e.I("v_add_u32 v%d, s%d, v%d" % (T_A, S_T0, T_A))
    e.I("v_lshl_add_u32 v%d, v%d, 7, v%d" % (T_C, T_A, T_C))
    e.I("v_add_u32 v%d, s%d, v%d" % (V_XR, S_T2, T_C))
    e.I("v_mul_u32_u24 v%d, 1536, v%d" % (T_A, T_A))
    e.I("v_lshl_add_u32 v%d, v%d, 4, v%d" % (T_A, T_B2, T_A))
    e.I("s_mul_i32 s%d, s%d, 384" % (S_T1, S_T1))
    e.I("s_add_u32 s%d, s%d, 128" % (S_T1, S_T1))
    e.I("v_add_u32 v%d, s%d, v%d" % (V_ST3, S_T1, T_A))
    e.I("v_lshrrev_b32 v%d, 1, v%d" % (T_C, T_P))
    for sg in range(4):
        e.I("v_add_u32 v%d, %d, v%d" % (T_A, 4 * sg, T_G))
        e.I("v_xor_b32 v%d, v%d, v%d" % (T_B2, T_A, T_P))
        e.I("v_lshlrev_b32 v%d, 4, v%d" % (T_B2, T_B2))
        e.I("v_mul_u32_u24 v%d, 1536, v%d" % (V_CB + sg, T_P))
        e.I("v_add_u32 v%d, v%d, v%d" % (V_CB + sg, V_CB + sg, T_B2))
        e.I("v_xor_b32 v%d, v%d, v%d" % (T_B2, T_A, T_C))
        e.I("v_lshlrev_b32 v%d, 4, v%d" % (T_B2, T_B2))
        e.I("v_mul_u32_u24 v%d, 768, v%d" % (T_A, T_P))
        e.I("v_add_u32 v%d, v%d, v%d" % (T_A, T_A, T_B2))
        e.I("v_add_u32 v%d, %d, v%d" % (V_PB + sg, 2 * SEG, T_A))
        e.I("v_add_u32 v%d, %d, v%d" % (V_PB2 + sg, 4 * SEG, T_A))
    e.I("v_mul_u32_u24 v%d, 73728, v%d" % (V_WL, T_W))
    e.I("v_lshl_add_u32 v%d, v%d, 4, v%d" % (V_WL, T_LANE, V_WL))
    e.I("v_mov_b32 v%d, 1" % V_ONE)
    if FLAGST:
        e.I("s_lshl_b32 s%d, s%d, 1" % (S_DONE, S_ITEM))
        e.I("v_min_u32 v%d, 35, v%d" % (V_PO, T_LANE))
        e.I("v_lshlrev_b32 v%d, 2, v%d" % (V_PO, V_PO))
    else:
        e.I("v_mov_b32 v%d, 0" % V_PO)
    e.I("s_mul_i32 s%d, s%d, %d" % (S_T0, S_WID, 1 if INTER else NU))
    for u in range(3):
        e.I("s_add_u32 s%d, s%d, %d" % (S_T1, S_T0, u * USTR))
        e.I("s_mul_i32 s%d, s%d, 43691" % (S_T2, S_T1))
        e.I("s_lshr_b32 s%d, s%d, 19" % (S_T2, S_T2))
        e.I("s_mul_i32 s%d, s%d, 12" % (S_T2, S_T2))
        if u == 2:
            e.I("s_sub_u32 s%d, s%d, s%d" % (S_CX, S_T1, S_T2))
        e.I("s_add_u32 s%d, s%d, s%d" % (S_T2, S_T2, S_T1))
        e.I("s_mul_i32 s%d, s%d, %d" % (S_SEGQ + 2 * u, S_T2, SEG))
        e.I("s_add_u32 s%d, s%d, %d" % (S_SEGQ + 2 * u + 1, S_SEGQ + 2 * u, ROW))
    e.I("s_mov_b32 s%d, 0x%x" % (S_UP1, OOB))
    e.I("s_mov_b32 s%d, s%d" % (S_U0, S_SEGQ))
    e.I("s_mov_b32 s%d, s%d" % (S_U0R, S_SEGQ + 1))
    e.I("s_mov_b32 s%d, s%d" % (S_U1, S_SEGQ + 2))
    e.I("s_mov_b32 s%d, s%d" % (S_U2, S_SEGQ + 4))
    e.I("s_mov_b32 s%d, s%d" % (S_UL, S_SEGQ + 4))
    e.I("s_mov_b32 s%d, s%d" % (S_JS0, S_SEGQ + 2))
    e.I("s_mov_b32 s%d, s%d" % (S_JS1, S_SEGQ + 3))
    e.I("s_add_u32 s%d, s%d, %d" % (S_JP, S_W6, PAIR))
    e.I("s_mov_b32 s%d, s%d" % (S_JL, S_JP))
    e.I("s_add_u32 s%d, s%d, %d" % (S_JLIM, S_W6, 3 * PAIR))
    e.I("s_mov_b32 s%d, %d" % (S_DN, PAIR))
    e.I("s_mov_b32 s%d, 0" % S_PI)
    e.I("s_mov_b32 s%d, 12" % S_QI)
    e.I("s_mov_b32 s%d, 0" % S_CNT)

    e.stamp(K("addr"))
    n = cond_begin("nonprod")
    for cls in "FS":
        if FIRST[cls]:
            uid[0] += 1
            lab = "L_cf%d" % uid[0]
            e.I("s_cbranch_%s %s" % ("vccnz" if cls == "F" else "vccz", lab))
            e.block("cf%d" % uid[0], cls + "n")
            for nm in FIRST[cls]:
                for op in job_ops(nm):
                    op()
            e.block("cg%d" % uid[0], "nonprod")
            e.L(lab)
    cond_end(n)
    n = cond_begin("prod")
    e.I("v_lshrrev_b32 v%d, 2, v%d" % (T_A, T_P))
    e.I("v_and_b32 v%d, 3, v%d" % (T_B2, T_P))
    e.I("v_lshl_add_u32 v%d, v%d, 3, v%d" % (T_C, T_G, T_A))
    e.I("v_lshlrev_b32 v%d, 7, v%d" % (T_C, T_C))
    e.I("v_lshl_add_u32 v%d, v%d, 4, v%d" % (T_C, T_B2, T_C))
    e.I("s_and_b32 s%d, s%d, 1" % (S_T0, S_W))
    e.I("s_lshl_b32 s%d, s%d, 3" % (S_T0, S_T0))
    e.I("s_lshr_b32 s%d, s%d, 1" % (S_T1, S_W))
    e.I("s_lshl_b32 s%d, s%d, 6" % (S_T1, S_T1))
    e.I("s_add_u32 s%d, s%d, s%d" % (S_T0, S_T0, S_T1))
    e.I("v_add_u32 v%d, s%d, v%d" % (T_PA + 8, S_T0, T_C))
    e.I("v_lshl_add_u32 v%d, v%d, 3, v%d" % (T_A, T_A, T_B2))
    for t in range(2):
        if t:
            e.I("v_add_u32 v%d, 4, v%d" % (T_A, T_A))
        e.I("v_lshrrev_b32 v%d, 1, v%d" % (T_B2, T_A))
        e.I("v_mul_u32_u24 v%d, 768, v%d" % (T_C, T_A))
        e.I("v_add_u32 v%d, %d, v%d" % (T_C, 4 * SEG, T_C))
        for sg in range(4):
            r = T_PA + 4 * t + sg
            e.I("v_add_u32 v%d, %d, v%d" % (r, 4 * sg, T_G))
            e.I("v_xor_b32 v%d, v%d, v%d" % (r, r, T_B2))
            e.I("v_lshl_add_u32 v%d, v%d, 4, v%d" % (r, r, T_C))
    e.I("v_lshlrev_b32 v%d, 4, v%d" % (T_PA + 9, T_LANE))
    for nm in PFIRST0:
        for op in job_ops(nm):
            op()
    e.wvm(lambda env, t: t == ("wl",))
    e.I("s_barrier")
    for sp in range(12):
        for h in range(2):
            r = V_ACC + 4 * sp + 2 * h
            e.lg("ds_read_b64_tr_b16 v[%d:%d], v%d offset:%d" % (r, r + 1, T_PA + 8, STRIPE + 4096 * sp + 512 * h), K(("pr", sp)))
        for t in range(2):
            r = PR + 8 * sp + 4 * t
            e.lg("ds_read_b128 v[%d:%d], v%d offset:%d" % (r, r + 3, T_PA + 4 * t + (sp & 3), 256 * (sp >> 2)), K(("pr", sp)))
    for nm in PFIRST1:
        for op in job_ops(nm):
            op()
    for sp in range(12):
        e.wlg(lambda env, t, sp=sp: t == ("pr", sp))
        for t in range(2):
            r = PR + 8 * sp + 4 * t
            d = PD + 4 * t
            cc = "0" if sp == 0 else "v[%d:%d]" % (d, d + 3)
            e.I("v_mfma_f32_16x16x32_bf16 v[%d:%d], v[%d:%d], v[%d:%d], %s"
                % (d, d + 3, r, r + 3, V_ACC + 4 * sp, V_ACC + 4 * sp + 3, cc))
    e.I("s_barrier")
    e.I("s_nop 7")
    for q in range(4):
        e.I("v_cvt_pk_bf16_f32 v%d, v%d, v%d" % (PD + 8 + q, PD + 2 * q, PD + 2 * q + 1))
    e.vm("buffer_store_dwordx4 v[%d:%d], v%d, s[%d:%d], s%d offen sc1"
         % (PD + 8, PD + 11, T_PA + 9, S_WS, S_WS + 3, S_PO), K(("pst",)))
    cond_end(n)
    e.stamp(K("prod"))
    for s in range(NBUF - LATE2):
        dma_wo(s)
    e.stamp(K("woiss"))

    def signal():
        n = cond_begin("prod")
        e.wvm(lambda env, t: t == ("pst",))
        e.I("s_barrier")
        e.I("s_cmp_lg_u32 s%d, 0" % S_W)
        e.I("s_cbranch_scc1 L_nosig")
        e.I("s_mov_b64 exec, 1")
        if FLAGST:
            e.I("buffer_store_short v%d, off, s[%d:%d], s%d sc1" % (V_ONE, S_DBG, S_DBG + 3, S_DONE))
        else:
            e.I("buffer_atomic_add v%d, off, s[%d:%d], 0 sc1" % (V_ONE, S_DBG, S_DBG + 3))
        e.I("s_mov_b64 exec, -1")
        e.I("s_nop 3")
        e.L("L_nosig")
        cond_end(n)

    def tr_reads(s):
        slot = BUFSLOT[s % NBUF]
        e.wvm(lambda env, t, s=s: t == ("wo", s))
        if COOP:
            e.I("s_barrier")
            if s >= 1 and s - 1 + NBUF < 12 and not DMALATE:
                dma_wo(s - 1 + NBUF)
        if STAMPWO:
            e.stamp(K("w%d" % s))
        for b in range(6):
            j, beta = b >> 1, b & 1
            for h in range(2):
                base = T_TR + j + (3 if slot >= 3 else 0)
                off = (slot % 3) * SEG + (3072 if COOP else 768) * h + 8 * beta
                e.lg("ds_read_b64_tr_b16 %s, v%d offset:%d" % (wreg(s * 6 + b, h), base, off), K(("tr", s)))

    def mkstep(s, ab, cinit, rd, wc=False, ch=False):
        return dict(s=s, ab=ab, cinit=cinit, rd=rd, pre=[], fill=[], wc=wc, ch=ch and CHAIN)

    def emit_read(tf, i, rd):
        base, off = rd
        r = V_B + 4 * (i % NB)
        e.lg("ds_read_b128 v[%d:%d], v%d offset:%d" % (r, r + 3, base, off), lambda env, i=i: ("b", tf(env) + i))

    def emit_steps(tf, steps, nxt, issued):
        rds = [st["rd"] for st in steps] + nxt
        i = 0
        while i < len(steps):
            grp = [i, i + 1] if steps[i]["ch"] else [i]
            e.C("step %d (s=%d)%s" % (i, steps[i]["s"], " x2" if len(grp) == 2 else ""))
            e.wlg(lambda env, t, i=i: t == ("b", tf(env) + i))
            fl = []
            for ii in grp:
                assert ii == i or not steps[ii]["pre"], "pre on second step of a chain"
                fl += steps[ii]["fill"]
            for f in steps[i]["pre"]:
                f()
            slots = [(ii, b) for b in range(6) for ii in grp]
            nrd = 0
            gaps = len(slots) - len(grp)
            k = 0
            for pos, (ii, b) in enumerate(slots):
                st = steps[ii]
                f = st["s"] * 6 + b
                if pos == 1 and len(grp) == 2:
                    e.wlg(lambda env, t, ii=ii: t == ("b", tf(env) + ii))
                if st["wc"]:
                    e.wvm(lambda env, t, f=f: t == ("wc", f))
                a = st["ab"] + 4 * b
                br = V_B + 4 * (ii % NB)
                if st["cinit"] is None:
                    cc = "v[%d:%d]" % (a, a + 3)
                elif st["cinit"] == 0:
                    cc = "0"
                else:
                    cc = "v[%d:%d]" % (V_QF + 4 * b, V_QF + 4 * b + 3)
                e.I("v_mfma_f32_16x16x32_bf16 v[%d:%d], %s, v[%d:%d], %s" % (a, a + 3, wreg(f), br, br + 3, cc))
                if pos < len(grp):
                    if issued < i + 4:
                        emit_read(tf, issued, rds[issued])
                        issued += 1
                else:
                    g = pos - len(grp)
                    want = (len(fl) * (g + 1) + gaps - 1) // gaps
                    while k < min(want, len(fl)):
                        fl[k]()
                        k += 1
            assert k == len(fl)
            i += len(grp)
        return issued - len(steps)

    def pack_list(ab, dst0):
        return [I_("v_cvt_pk_bf16_f32 v%d, v%d, v%d" % (dst0 + i, ab + 2 * i, ab + 2 * i + 1)) for i in range(12)]

    def unpack_ins(i, src0):
        src = src0 + (i >> 1)
        if i & 1:
            return "v_and_b32 v%d, 0xffff0000, v%d" % (V_QF + i, src)
        return "v_lshlrev_b32 v%d, 16, v%d" % (V_QF + i, src)

    def rd_p(t, s):
        lds, par = unit_lds(t)
        sg = (s & 3) ^ (2 * par)
        if lds < 4 * SEG:
            return (V_PB + sg, lds - 2 * SEG + (s >> 2) * 256)
        return (V_PB2 + sg, lds - 4 * SEG + (s >> 2) * 256)

    def rd_c(k, s):
        if k == 4:
            k = 0
        return (V_CB + (s & 3), (k >> 1) * SEG + (k & 1) * 768 + (s >> 2) * 256)

    X, Y = V_Q + 60, V_Q + 84
    PASET = {2: [X, Y], 4: [X, Y, accb(1), V_Q + 36]}[NA]
    steps = []
    for s in range(12):
        for t in range(NA):
            steps.append(mkstep(s, PASET[t], 0 if s == 0 else None, rd_p(t, s)))
    U0 = {}
    for t in range(NA, 5):
        U0[t] = len(steps)
        for s in range(12):
            steps.append(mkstep(s, accb(t & 1), 0 if s == 0 else None, rd_p(t, s), ch=True))
    PB0 = len(steps)
    PBSET = {5: X, 6: Y, 7: accb(1), 8: V_QF}
    for s in range(12):
        for t in (5, 6, 7, 8):
            steps.append(mkstep(s, PBSET[t], 0 if s == 0 else None, rd_p(t, s)))
    G0 = len(steps)
    for s in range(12):
        steps.append(mkstep(s, accb(0), 0 if s == 0 else None, rd_c(0, s), wc=True, ch=True))

    def spread(ops, i0, per_step):
        for k, op in enumerate(ops):
            steps[i0 + k // per_step]["fill"].append(op)

    def spread_every(ops, i0, stride):
        for k, op in enumerate(ops):
            steps[i0 + k * stride]["fill"].append(op)

    def cls_cluster(cls, ops):
        def f():
            n = cond_begin(cls)
            for op in ops:
                op()
            cond_end(n)
        return f

    for s in range(12):
        def pre(s=s):
            e.wlg(lambda env, t: t == ("tr", s))
            if s + NBUF < 12 and not COOP:
                dma_wo(s + NBUF)
            if s + 1 < 12:
                tr_reads(s + 1)
                if COOP and DMALATE and s + NBUF < 12:
                    dma_wo(s + NBUF)
            else:
                e.stamp(K("wo_done"))
        steps[s * NA]["pre"].append(pre)

    steps[SIGAT]["pre"].append(signal)
    if NA == 2:
        work = pack_list(X, V_Q) + pack_list(Y, V_Q + 12)
        spread(work, U0[2] + 2, 4)
    else:
        work = pack_list(X, V_Q) + pack_list(Y, V_Q + 12) + pack_list(accb(1), V_Q + 24) + pack_list(V_Q + 36, V_Q + 36)
        spread(work, U0[4] + 2, 5)
    for t in range(NA, 5):
        spread(pack_list(accb(t & 1), V_Q + 12 * t), U0[t] + 12 + 2, 4)

    def barrier(pred, name=None, extra=None):
        def f():
            if pred:
                e.kwvm(pred)
            if extra:
                extra()
            e.I("s_barrier")
            if name:
                e.stamp(K(name))
        return f

    def poll_check():
        e.I("s_mov_b32 s%d, 0" % S_SPIN)
        e.I("s_cmp_lg_u32 s%d, 0" % S_W)
        e.I("s_cbranch_scc1 L_spun")
        e.L("L_spin")
        if FLAGST:
            e.I("v_cmp_ne_u32 vcc, 0x10001, v%d" % V_POLL)
            e.I("s_nop 4")
            e.I("s_cbranch_vccz L_spun")
        else:
            e.I("v_readfirstlane_b32 s%d, v%d" % (S_T0, V_POLL))
            e.I("s_cmp_ge_u32 s%d, %d" % (S_T0, NDONE))
            e.I("s_cbranch_scc1 L_spun")
        e.I("s_add_u32 s%d, s%d, 1" % (S_SPIN, S_SPIN))
        e.I("s_cmp_gt_u32 s%d, 0x40000" % S_SPIN)
        e.I("s_cbranch_scc1 L_spun")
        e.I("s_sleep 16")
        e.I("buffer_load_dword v%d, v%d, s[%d:%d], 0 offen sc1" % (V_POLL, V_PO, S_DBG, S_DBG + 3))
        e.I("s_waitcnt vmcnt(0)")
        e.I("s_branch L_spin")
        e.L("L_spun")

    if NA == 2:
        steps[U0[2] - 4]["pre"].append(barrier(lambda env, t: t == ("p23",)))
    steps[U0[4] - 4]["pre"].append(barrier(lambda env, t: t == ("p4",), "b2"))
    steps[PB0 - 4]["pre"].append(barrier(lambda env, t: t in (("p56",), ("p78",), ("poll",)), "b3", poll_check))
    for at in XBAR:
        steps[at]["pre"].append(barrier(None))

    def wc_prefetch():
        e.I("s_cmp_ge_u32 s%d, 24" % S_RANK)
        e.I("s_mul_i32 s%d, s%d, 3072" % (S_T0, S_RANK))
        e.I("s_cselect_b32 s%d, 0x%x, s%d" % (S_T0, OOB, S_T0))
        e.I("s_lshl_b32 s%d, s%d, 10" % (S_T1, S_W))
        uid[0] += 1
        e.I("s_add_u32 m0, s%d, %d ; m0id=%d" % (S_T1, 13 * BLK, uid[0]))
        for i in range(3):
            e.I("s_nop 0" if i == 0 else "s_add_u32 s%d, s%d, 1024" % (S_T0, S_T0))
            e.vm("buffer_load_dwordx4 v%d, s[%d:%d], s%d offen sc1 lds ; m0id=%d" % (V_WL, S_WS, S_WS + 3, S_T0, uid[0]), K(("pf",)))
    if WCPF:
        steps[PB0 - 4]["fill"].insert(0, wc_prefetch)
    steps[G0 - 4]["pre"].append(barrier(lambda env, t: t == ("c", 0), "b4"))
    steps[G0 + 2]["pre"].append(barrier(None, "g0"))
    steps[POLLAT]["fill"].append(lambda: e.vm("buffer_load_dword v%d, v%d, s[%d:%d], 0 offen sc1"
                                              % (V_POLL, V_PO, S_DBG, S_DBG + 3), K(("poll",))))
    def slot_setup(names):
        def one(nm):
            if nm == "-":
                e.I("s_mov_b32 s%d, 0x%x" % (S_GS, OOB))
                e.I("s_mov_b32 s%d, 0x%x" % (S_GL, LDS_DUMMY))
                return
            src = S_P if nm[0] == "p" else S_C
            for i in range(3):
                e.I("s_mov_b32 s%d, s%d" % (S_G + i, src + i))
            if nm[0] == "p":
                u0, lds = PJOB[nm]
                e.I("s_add_u32 s%d, s%d, %d" % (S_GS, S_PSRC, u0 * BLK * USTR))
                e.I("s_add_u32 s%d, s%d, %d" % (S_GL, S_W6, lds))
                if nm == "p4":
                    e.I("s_cmp_lt_u32 s%d, 2" % S_W)
                    e.I("s_cselect_b32 s%d, s%d, 0x%x" % (S_GS, S_GS, OOB))
                    e.I("s_cselect_b32 s%d, s%d, 0x%x" % (S_GL, S_GL, LDS_DUMMY))
            else:
                n = int(nm[1:])
                e.I("s_mov_b32 s%d, s%d" % (S_GS, S_SEGQ + n))
                e.I("s_add_u32 s%d, s%d, %d" % (S_GL, S_W6, n * SEG))

        def f():
            base = max(set(names), key=names.count)
            one(base)
            for kd_, nm in enumerate(names):
                if nm != base:
                    uid[0] += 1
                    e.I("s_cmp_lg_u32 s%d, %d" % (S_KIND, kd_))
                    e.I("s_cbranch_scc1 L_sl%d" % uid[0])
                    one(nm)
                    e.L("L_sl%d" % uid[0])
        return f

    def tag_of(nm):
        return ("dummy",) if nm == "-" else ((nm,) if nm[0] == "p" else ("c", int(nm[1:])))

    bars = sorted([U0[4] - 4, PB0 - 4, G0 - 4, G0 + 2] + list(XBAR))
    nb_after = lambda x: min(b_ for b_ in bars if b_ >= x)
    MINSTEP = {"p78": 9 * NA, "c0": 10 * NA, "c1": nb_after(11 * NA) if COOP else 11 * NA, "c2": nb_after(12 * NA), "c3": nb_after(48), "c4": nb_after(G0)}
    last = -1
    for i0, stride, names in SLOTS:
        for nm in names:
            assert i0 >= MINSTEP.get(nm.rstrip("a"), 0), (nm, i0)
        assert i0 > last
        ops = []
        half = names[0].endswith("a")
        names = tuple(nm.rstrip("a") for nm in names)
        for q0 in ((0,) if half else (0, 3)):
            ops += dma_cluster(V_CDMA, q0, S_G, S_GS, S_GL, 0, lambda env, names=names: tag_of(names[env["kind"]]), LDF, None, True)
        steps[i0]["fill"].append(slot_setup(list(names)))
        for q, op in enumerate(ops):
            last = i0 + int(q * stride)
            steps[last]["fill"].append(op)

    def load_wc(f):
        def op():
            if f % 4 == 0:
                e.I("s_mov_b32 s%d, %d" % (S_WOFF, 4096 * (f >> 2)))
            e.vm("buffer_load_dwordx4 %s, v%d, s[%d:%d], s%d offen offset:%d sc1"
                 % (wreg(f), V_WL, S_WS, S_WS + 3, S_WOFF, 1024 * (f & 3)), K(("wc", f)))
        return op
    for s in range(12):
        for b in range(6):
            f = s * 6 + b
            lo = PB0 + 4 * (s + 1) + ((b * 4) // 6 if s < 11 else 0)
            steps[lo]["fill"].append(load_wc(f))
    work = pack_list(PBSET[5], V_Q + 60) + pack_list(PBSET[6], V_Q + 72) + pack_list(PBSET[7], V_Q + 84) \
        + pack_list(PBSET[8], V_Q + 96) + [I_(unpack_ins(i, V_Q)) for i in range(24)]
    spread(work, G0 + 1, 7)

    e.kwvm(lambda env, t: t[0] in (("p01",) if NA == 2 else ("p01", "p23")))
    if not COOP:
        e.I("s_barrier")
    e.stamp(K("p_ready"))
    t0 = lambda env: 0
    if COOP:
        tr_reads(0)
    for i in range(D):
        emit_read(t0, i, steps[i]["rd"])
    if not COOP:
        tr_reads(0)
    if LATE2:
        dma_wo(NBUF - 1)
    ISS = emit_steps(t0, steps, [rd_c(1, s) for s in range(D)], D)
    e.I("s_nop 3")
    for i in range(24):
        e.I("v_add_f32 v%d, v%d, v%d" % (accb(0) + i, accb(0) + i, V_QF + i))
    e.I("s_mov_b64 vcc, 0")
    e.I("s_branch L_g1")

    def epi(pb, kprev, gf, soff):
        ab = accb(pb)
        cv = lambda j: [I_("v_cvt_pk_bf16_f32 v%d, v%d, v%d" % (ab + 8 * j + d, ab + 8 * j + 2 * d, ab + 8 * j + 2 * d + 1))
                        for d in range(4)]
        x0, x1, tt = ab, ab + 8, ab + 4
        cp = [I_("v_mov_b32 v%d, v%d" % (tt + d, x0 + d)) for d in range(4)]
        da = [I_("v_mov_b32_dpp v%d, v%d row_ror:8 row_mask:0xf bank_mask:0xc" % (x0 + d, x1 + d)) for d in range(4)]
        db = [I_("v_mov_b32_dpp v%d, v%d row_ror:8 row_mask:0xf bank_mask:0x3" % (x1 + d, tt + d)) for d in range(4)]
        xw = lambda: e.lg("ds_write_b128 v%d, v[%d:%d] offset:%d" % (V_XW, ab + 16, ab + 19, 4096 * kprev),
                          lambda env: ("xw", gf(env)))
        sa = lambda: e.vm("buffer_store_dwordx4 v[%d:%d], v%d, s[%d:%d], s%d offen offset:%d%s"
                          % (x0, x0 + 3, V_ST, S_OUT, S_OUT + 3, soff, 768 * (kprev & 1), STF), K(("st",)))
        sb = lambda: e.vm("buffer_store_dwordx4 v[%d:%d], v%d, s[%d:%d], s%d offen offset:%d%s"
                          % (x1, x1 + 3, V_ST2, S_OUT, S_OUT + 3, soff, 768 * (kprev & 1), STF), K(("st",)))
        return dict(cv=cv, cp=cp, da=da, db=db, xw=xw, sa=sa, sb=sb)

    def xrd(reg, kk, gf):
        return lambda: e.lg("ds_read_b128 v[%d:%d], v%d offset:%d" % (reg, reg + 3, V_XR, 4096 * kk),
                            lambda env: ("xr", gf(env)))

    def xst(reg, kk, gf, soff):
        def op():
            e.wlg(lambda env, t: t == ("xr", gf(env)))
            e.vm("buffer_store_dwordx4 v[%d:%d], v%d, s[%d:%d], s%d offen offset:%d%s"
                 % (reg, reg + 3, V_ST3, S_OUT, S_OUT + 3, soff, 768 * (kk & 1), STF), K(("st",)))
        return op

    SOFF = {3: S_UP1, 0: S_U0, 1: S_U0, 2: S_U0R}

    def multi(lst):
        def f():
            for ins in lst:
                e.I(ins)
        return f

    def loop_group(k):
        gam = lambda env: 4 * env["u"] + k
        buf = k & 1
        pb = buf ^ 1
        kprev = (k - 1) % 4
        st = [mkstep(s, accb(buf), 1 if s == 0 else None, rd_c(k, s), ch=True) for s in range(12)]
        F = lambda s, op: st[s]["fill"].append(op)
        ep = epi(pb, kprev, lambda env: gam(env) - 1, SOFF[kprev])
        for op in ep["cv"](2): F(1, op)
        if "xw" not in DROP: F(2, ep["xw"])
        for op in ep["cv"](0): F(2, op)
        for op in ep["cv"](1): F(3, op)
        if "dpp" not in DROP:
            for op in ep["cp"]: F(3, op)
            for op in ep["da"]: F(4, op)
            for op in ep["db"]: F(5, op)
        hj = (k + 1 - SHIFT) % 4
        par, q0 = hj >> 1, 3 * (hj & 1)
        vof = (k + 1 - SHIFT) // 4 + 1
        dm = dma_cluster(V_CDMA, q0, S_C, S_JS0 + par, S_JL, par * SEG,
                         lambda env: ("c", 2 * (env["u"] + vof) + par), LDF, None, True)
        if SKIP:
            def guard(op):
                def f():
                    uid[0] += 1
                    n = uid[0]
                    e.I("s_cbranch_vccnz L_skip%d" % n)
                    e.block("c%d" % n, ("dma", vof))
                    op()
                    e.block("s%d" % n, "loop")
                    e.L("L_skip%d" % n)
                return f
            dm = [guard(op) for op in dm]
        act = multi(["s_cmp_lt_u32 s%d, 7" % S_CNT, "s_cselect_b64 vcc, 0, -1",
                     "s_mov_b32 s%d, s%d" % (S_JS0, S_NS), "s_mov_b32 s%d, s%d" % (S_JL, S_NL),
                     "s_add_u32 s%d, s%d, %d" % (S_JS1, S_NS, ROW)])
        if k & 1:
            def bar():
                e.stamp(lambda env: "a%d" % gam(env), True)
                e.mwvm(lambda env, t: t == ("c", (gam(env) + 1) // 2))
                e.wlg(lambda env, t: t == ("xw", gam(env) - 1))
                e.stamp(lambda env: "w%dx" % gam(env), True)
                e.I("s_barrier")
                e.stamp(lambda env: "b%d" % gam(env), True)
                if k == 1:
                    e.stamp(lambda env: "u%d" % env["u"])
            st[4]["pre"].append(bar)
            r1, r2 = accb(pb) + 12, accb(pb) + 20
            k2, k1 = (k - 2) % 4, (k - 1) % 4
            if "xw" not in DROP:
                F(4, xrd(r1, k2, lambda env: gam(env) - 2))
                F(4, xrd(r2, k1, lambda env: gam(env) - 1))
            seq = [(5, ep["sa"]), (6, dm[0]), (7, ep["sb"]), (8, xst(r1, k2, lambda env: gam(env) - 2, SOFF[k2])),
                   (9, dm[1]), (10, xst(r2, k1, lambda env: gam(env) - 1, SOFF[k1])), (11, dm[2])]
        else:
            seq = [(0, dm[0]), (5, ep["sa"]), (7, dm[1]), (8, ep["sb"]), (10, dm[2])]
        for s_, op in seq:
            F(s_, op)
        post = []
        if SHIFT == 0 and k == 3:
            post.append((5, act))
        elif SHIFT > 0 and hj == 3:
            post.append((11, act))
        if k == 3:
            F(1, multi(["s_add_u32 s%d, s%d, %d" % (S_CX, S_CX, USTR % 12),
                        "s_cmp_ge_u32 s%d, 12" % S_CX,
                        "s_cselect_b32 s%d, %d, 0" % (S_T0, 12 * SEG),
                        "s_cselect_b32 s%d, 12, 0" % S_T1]))
            F(2, multi(["s_sub_u32 s%d, s%d, s%d" % (S_CX, S_CX, S_T1),
                        "s_add_u32 s%d, s%d, s%d" % (S_UL, S_UL, S_T0),
                        "s_add_u32 s%d, s%d, %d" % (S_UL, S_UL, (USTR + 12 * (USTR // 12)) * SEG)]))
            F(3, multi(["s_add_u32 s%d, s%d, %d" % (S_JP, S_JP, PAIR),
                        "s_cmp_ge_u32 s%d, s%d" % (S_JP, S_JLIM),
                        "s_cselect_b32 s%d, %d, 0" % (S_T0, 3 * PAIR),
                        "s_sub_u32 s%d, s%d, s%d" % (S_JP, S_JP, S_T0)]))
            F(4, multi(["s_cmp_lt_u32 s%d, 7" % S_CNT,
                        "s_cselect_b32 s%d, s%d, 0x%x" % (S_NS, S_U2, OOB if DUMMY < 2 else 0),
                        ("s_cselect_b32 s%d, s%d, 0x%x" % (S_NL, S_JP, LDS_DUMMY)) if DUMMY == 0 else
                        ("s_mov_b32 s%d, s%d" % (S_NL, S_JP))]))
            for n in range(4):
                F(8, I_("v_add_u32 v%d, s%d, v%d" % (V_CB + n, S_DN, V_CB + n)))
            if "unp" not in DROP:
                for n in range(6):
                    blk = ["s_set_gpr_idx_on s%d, gpr_idx(SRC1)" % S_QI] + \
                          [unpack_ins(4 * n + r, V_Q) for r in range(4)] + ["s_set_gpr_idx_off"]
                    F((6, 7, 8, 9, 10, 11)[n], multi(blk))
            F(11, multi(["s_mov_b32 s%d, s%d" % (S_UP1, S_U0R),
                         "s_mov_b32 s%d, s%d" % (S_U0, S_U1)]))
            F(11, multi(["s_add_u32 s%d, s%d, %d" % (S_U0R, S_U1, ROW),
                         "s_add_u32 s%d, s%d, 1" % (S_CNT, S_CNT)]))
        if k == 0:
            F(8, multi(["s_mov_b32 s%d, s%d" % (S_U1, S_U2),
                        "s_mov_b32 s%d, s%d" % (S_U2, S_UL)]))
            F(9, multi(["s_add_u32 s%d, s%d, 1" % (S_PI, S_PI),
                        "s_cmp_eq_u32 s%d, 3" % S_PI,
                        "s_cselect_b32 s%d, 0, s%d" % (S_PI, S_PI)]))
            F(10, multi(["s_cmp_eq_u32 s%d, 2" % S_PI,
                         "s_cselect_b32 s%d, %d, 0" % (S_DN, -3 * PAIR),
                         "s_add_u32 s%d, s%d, %d" % (S_DN, S_DN, PAIR)]))
            F(11, I_("s_add_u32 s%d, s%d, 12" % (S_QI, S_QI)))
        for s_, op in post:
            F(s_, op)
        r = emit_steps(lambda env: G0 + 12 * gam(env), st, [rd_c(k + 1, s) for s in range(D)], ISS)
        assert r == ISS

    e.block("lg0", "loop")
    e.L("L_top")
    loop_group(0)
    e.block("lg123", "loop")
    e.L("L_g1")
    for k in (1, 2, 3):
        loop_group(k)
    e.I("s_cmp_lt_u32 s%d, %d" % (S_CNT, NU))
    e.I("s_cbranch_scc1 L_top")

    e.block("tail", "loop")
    e.stamp(K("tail"))
    ep = epi(1, 3, lambda env: 35, S_UP1)
    e.I("s_nop 7")
    for op in ep["cv"](2): op()
    ep["xw"]()
    for op in ep["cv"](0) + ep["cv"](1) + ep["cp"] + ep["da"] + ep["db"]:
        op()
    e.wlg(lambda env, t: t == ("xw", 35))
    e.I("s_barrier")
    xrd(accb(1) + 20, 3, lambda env: 35)()
    ep["sa"]()
    ep["sb"]()
    xst(accb(1) + 20, 3, lambda env: 35, S_UP1)()
    if STAMP:
        e.stamp(K("issued"))
        e.syncvm()
        e.synclg()
        e.stamp(K("end"))
        e.synclg()
        e.stamp(K("x"))
        e.I("v_mbcnt_lo_u32_b32 v21, -1, 0")
        e.I("v_mbcnt_hi_u32_b32 v21, -1, v21")
        e.I("v_lshlrev_b32 v21, 2, v21")
        e.I("s_lshl_b32 s%d, s2, 2" % S_T0)
        e.I("s_add_u32 s%d, s%d, s%d" % (S_T0, S_T0, S_W))
        e.I("s_lshl_b32 s%d, s%d, 8" % (S_T0, S_T0))
        e.I("s_add_u32 s%d, s%d, %d" % (S_T0, S_T0, 4 << 20))
        e.I("buffer_store_dword v%d, v21, s[%d:%d], s%d offen" % (V_STAMP, S_WS, S_WS + 3, S_T0))
    e.L("L_end")
    e.I("s_endpgm")

    def trace(kind):
        cls, prod = kind
        kn = 2 if prod else (0 if cls == "F" else 1)
        tr = []
        for nm in e.order:
            c = e.cond[nm]
            if c is None or (c == "prod" and prod) or (c == "nonprod" and not prod) or c == cls \
                    or (c == cls + "n" and not prod):
                tr.append((nm, {"kind": kn}))
        i0, i1, i2 = e.order.index("lg0"), e.order.index("lg123"), e.order.index("tail")
        for u in range(NU):
            env = {"u": u, "kind": kn}
            for nm in (e.order[i0:i2] if u else e.order[i1:i2]):
                c = e.cond[nm]
                if c == "loop" or u + c[1] <= 8:
                    tr.append((nm, env))
        tr.append(("tail", {"kind": kn}))
        return tr
    kinds = [("S", False), ("F", False), ("S", True)]
    e.resolve([trace(k) for k in kinds])
    if STAMP:
        names = ["entry"] + e.stamp_names(trace(kinds[0]))[:-1]
        open("stamps.txt", "w").write(",".join(names))
    for k in kinds:
        tags = {}
        for nm, env in trace(k):
            for it in e.blocks[nm]:
                if it[0] == "vm":
                    t = it[2](env)
                    tags[t] = tags.get(t, 0) + 1
        for t in [(x,) for x in PJOB] + [("c", n) for n in range(18)]:
            assert tags.get(t) == 6, (k, t, tags.get(t))
    txt = e.text()
    check_m0(txt)
    import hazard
    for pr in kinds:
        errs = hazard.check(e.text([nm for nm, env in trace(pr)]).splitlines())
        for x in errs:
            sys.stderr.write("HAZARD: " + x + "\n")
        assert not errs
    return txt


def check_m0(txt):
    cur = None
    for ln in txt.splitlines():
        code = ln.split(";")[0]
        if " m0," in code or "s_set_gpr_idx" in code or code.strip().endswith(":"):
            cur = ln.split("m0id=")[1].strip() if "m0id=" in ln else None
        elif code.rstrip().endswith(" lds"):
            want = ln.split("m0id=")[1].strip()
            assert cur == want, "m0 clobbered before: " + ln


STAMPWO = opt("STAMPWO", 0)
NA = opt("NA", 2)
CHAIN = opt("CHAIN", 1)
PRODPAR = opt("PRODPAR", 0)
SHIFT = opt("SHIFT", 0)
LATE2 = opt("LATE2", 1)
SKIP = opt("SKIP", 0)
FLAGST = opt("FLAGST", 0)
COOP = opt("COOP", 0)
DUMMY = opt("DUMMY", 1)
DMALATE = opt("DMALATE", 1)
FIRST = {"F": eval(opt("FIRSTF", "['p23']")), "S": eval(opt("FIRSTS", "['p23']"))}
PFIRST0 = eval(opt("PFIRST0", "['p01']"))
PFIRST1 = eval(opt("PFIRST1", "['p23']"))
_SL = "[(17,0.5,'p4'),(21,0.5,'p56'),(26,1,'p78'),(34,1,'c0'),(45,1,'c1')" + [",(110,1.5,'c2')]", ",(112,2,'c2a')]", "]"][SHIFT]
SLOTS = [(a_, b_, (c_,) * 3 if isinstance(c_, str) else c_) for a_, b_, c_ in eval(opt("SLOTS", _SL))]
XBAR = eval(opt("XBAR", "[]"))
WCPF = opt("WCPF", 1)
POLLAT = opt("POLLAT", 43)
CHKAT = opt("CHKAT", 0)
SIGAT = opt("SIGAT", 4)

HEADER = open("standalone__detection_seg_fpn_lateral__vision.s.ref").read().split("; Override")[0]


def kd(name, vgpr, accum, sgpr):
    return """.amdhsa_kernel %s
  .amdhsa_next_free_vgpr %d
  .amdhsa_next_free_sgpr %d
  .amdhsa_accum_offset %d
  .amdhsa_group_segment_fixed_size 0
  .amdhsa_kernarg_size 56
  .amdhsa_user_sgpr_count 2
  .amdhsa_user_sgpr_kernarg_segment_ptr 1
  .amdhsa_system_sgpr_workgroup_id_x 1
.end_amdhsa_kernel
""" % (name, vgpr, sgpr, accum)


DESC = """; Generated by gen13.py (own generator script).
; One persistent workgroup per CU (4 waves x 96 output channels, weights held in registers as MFMA A operands).
;   start : 72 workgroups compute one 32x64 tile of Wc each and hand it over through d_ws (sc1 stores + counter in d_debug)
;   phase 1: w_out is transposed through LDS into registers, Q = p_coarse @ w_out for the 144 coarse pixels of the
;            workgroup stays in registers (packed bf16); Wc replaces w_out in the registers during the last units
;   phase 2: c_fine streams HBM -> LDS ring (LDS-DMA, swizzled), acc = Q + c @ Wc, full 128-B lines are stored
"""


def main():
    out = HEADER
    out += "; @launch grid=(256,1,1) block=(256,1,1) lds=163840\n"
    out += '.amdgcn_target "amdgcn-amd-amdhsa--gfx950"\n.text\n'
    out += DESC
    out += ".globl %s\n.p2align 8\n.type %s,@function\n" % (KN, KN)
    out += gen()
    out += ".fill 4096, 4, 0xBF800000\n"
    out += '.section .rodata,"a"\n.p2align 6\n'
    out += kd(KN, 512, 256, 96)
    path = sys.argv[1] if len(sys.argv) > 1 else "standalone__detection_seg_fpn_lateral__vision.s"
    open(path, "w").write(out)


if __name__ == "__main__":
    main()
```
